```python
import torch

def _softmax(x, axis=-1):
    return torch.softmax(x, dim=axis)
def _gelu(x):
    return torch.nn.functional.gelu(x, approximate="tanh")
def _silu(x):
    return torch.nn.functional.silu(x)
def _sigmoid(x):
    return torch.sigmoid(x)
def _layernorm(x, axis=-1, eps=1e-5):
    m = x.mean(dim=axis, keepdim=True)
    v = x.var(dim=axis, keepdim=True, unbiased=False)
    return (x - m) / torch.sqrt(v + eps)
def _scatter_add(tgt, idx, src, axis=0):
    return tgt.clone().index_add_(axis, idx, src)
def _segment_sum(src, seg, n):
    out = torch.zeros((n,) + src.shape[1:], dtype=src.dtype)
    return out.index_add_(0, seg, src)
def _pad(x, pw):
    flat = tuple(v for pair in reversed(pw) for v in pair)
    return torch.nn.functional.pad(x, flat)

kernel_name = 'recurrent_scan__ssm_conv_h3__glu_gated_bilinear__prompt'

def setup_inputs():

    _w = (lambda a: (lambda t: t.to(torch.bfloat16) if t.is_floating_point() else t)(torch.as_tensor(a)))
    def _A_setup():
        B, S, D = 1, 2048, 512
        ks = 4
        return {
            "q": _w((lambda *s: torch.randn(*s, dtype=torch.bfloat16) * 0.05)(B, S, D)),
            "k": _w((lambda *s: torch.randn(*s, dtype=torch.bfloat16) * 0.8)(B, S, D)),
            "v": _w((lambda *s: torch.randn(*s, dtype=torch.bfloat16) * 0.8)(B, S, D)),
            "shift_k": _w((lambda *s: torch.randn(*s, dtype=torch.bfloat16) * 0.8)(D, ks) * 0.5),
            "ssm_k": _w((lambda *s: torch.randn(*s, dtype=torch.bfloat16) * 0.8)(D, S) * (1.0 / S ** 0.5)),
            "ssm_D": _w((lambda *s: torch.randn(*s, dtype=torch.bfloat16) * 0.8)(D)),
        }
    _A_in = _A_setup()

    def _B_setup():
        B, S, D, F = 1, 2048, 512, 1376
        return {
            "x": _w((lambda *s: torch.randn(*s, dtype=torch.bfloat16) * 0.05)(B, S, D)),
            "w_gate": _w((lambda *s: torch.randn(*s, dtype=torch.bfloat16) * 0.2)(D, F) * (D ** -0.5)),
            "w_up": _w((lambda *s: torch.randn(*s, dtype=torch.bfloat16) * 0.2)(D, F) * (D ** -0.5)),
            "w_down": _w((lambda *s: torch.randn(*s, dtype=torch.bfloat16) * 0.2)(F, D) * (F ** -0.5)),
        }
    _B_in = _B_setup()

    return {
        "A_q": _A_in["q"],
        "A_k": _A_in["k"],
        "A_v": _A_in["v"],
        "A_shift_k": _A_in["shift_k"],
        "A_ssm_k": _A_in["ssm_k"],
        "A_ssm_D": _A_in["ssm_D"],
        "B_x": _B_in["x"],
        "B_w_gate": _B_in["w_gate"],
        "B_w_up": _B_in["w_up"],
        "B_w_down": _B_in["w_down"],
    }

def reference(A_q, A_k, A_v, A_shift_k, A_ssm_k, A_ssm_D, B_x, B_w_gate, B_w_up, B_w_down):
    def _A_ref(q, k, v, shift_k, ssm_k, ssm_D):
        B, S, D = q.shape
        ks = shift_k.shape[-1]
        k_pad = _pad(k, ((0, 0), (ks - 1, 0), (0, 0)))
        k_shift = torch.zeros_like(k)
        for t in range(ks):
            k_shift = k_shift + k_pad[:, t:t + S, :] * shift_k[:, ks - 1 - t][None, None, :]
        kv = k_shift * v
        L = 2 * S
        kv_pad = _pad(kv, ((0, 0), (0, S), (0, 0)))
        kf_pad = _pad(ssm_k, ((0, 0), (0, S)))
        kv_f = (lambda x, axes=(-2,-1): torch.fft.rfft2(x.float(), dim=axes))(kv_pad[:, None, :, :], axes=(1, 2))
        kf_f = (lambda x, axes=(-2,-1): torch.fft.rfft2(x.float(), dim=axes))(kf_pad[:, None, :], axes=(1, 2))
        kf_f = (lambda x, *d: x.permute(*d))(kf_f, 1, 2, 0)
        y_f = kv_f * kf_f[None, :, :, :]
        y = (lambda x, s, axes=(-2,-1): torch.fft.irfft2(x, s=s, dim=axes).to(torch.bfloat16))(y_f, (1, L), axes=(1, 2))[:, 0, :S, :]
        y = y + kv * ssm_D[None, None, :]
        return q * y

    def _B_ref(x, w_gate, w_up, w_down):
        g = torch.einsum("bsd,df->bsf", x, w_gate)
        u = torch.einsum("bsd,df->bsf", x, w_up)
        h = g * u
        return torch.einsum("bsf,fd->bsd", h, w_down)

    x = A_q
    xn = _layernorm(x, axis=-1)
    s = _A_ref(xn, A_k, A_v, A_shift_k, A_ssm_k, A_ssm_D)
    g = _silu(_B_ref(xn, B_w_gate, B_w_up, B_w_down))
    return x + s * g
```

```python
class Asm:
    def __init__(self):
        self.L = []
        self.uid = 0
    def __call__(self, s):
        for line in s.split("\n"):
            line = line.strip()
            if line: self.L.append(line)
    def label(self, base):
        self.uid += 1
        return f"L_{base}_{self.uid}"
    def text(self):
        out = []
        for l in self.L:
            out.append(l if l.endswith(":") or l.startswith(".") or l.startswith(";") else "    " + l)
        return "\n".join(out) + "\n"

def vr(a, n=1):
    return f"v{a}" if n == 1 else f"v[{a}:{a+n-1}]"
def sr(a, n=1):
    return f"s{a}" if n == 1 else f"s[{a}:{a+n-1}]"

class LgkmTracker:
    def __init__(self, a, pending=None):
        self.a = a
        self.q = list(pending or [])
    def issue(self, text, tag):
        self.a(text)
        self.q.append(tag)
    def need(self, tags):
        idx = -1
        for i, t in enumerate(self.q):
            if t in tags: idx = i
        if idx < 0: return
        n = len(self.q) - 1 - idx
        n = min(n, 15)
        self.a(f"s_waitcnt lgkmcnt({n})")
        self.q = self.q[len(self.q) - n:] if n else []
    def drain(self):
        if self.q:
            self.a("s_waitcnt lgkmcnt(0)")
            self.q = []
```

```python
import re
def regs(tok):
    tok = tok.strip()
    tok = tok.lstrip("-")
    if tok.startswith("abs("): tok = tok[4:-1]
    if tok.startswith("|"): tok = tok.strip("|")
    m = re.fullmatch(r"([vsa])(\d+)", tok)
    if m: return {(m.group(1), int(m.group(2)))}
    m = re.fullmatch(r"([vsa])\[(\d+):(\d+)\]", tok)
    if m: return {(m.group(1), i) for i in range(int(m.group(2)), int(m.group(3)) + 1)}
    if tok == "vcc": return {("s", "vcc")}
    if tok == "m0": return {("s", "m0")}
    if tok == "exec": return {("s", "exec")}
    return set()
TRANS = ("v_exp_f32", "v_log_f32", "v_rcp_f32", "v_rsq_f32", "v_sqrt_f32", "v_sin_f32", "v_cos_f32")
def parse(line):
    line = line.split(";")[0].strip()
    if not line or line.endswith(":") or line.startswith("."): return None
    p = line.split(None, 1)
    op = p[0]
    rest = p[1] if len(p) > 1 else ""
    ops = []
    for x in rest.split(","):
        x = x.strip()
        if x: ops.append(x.split()[0])
    I = dict(op=op, line=line, w=set(), r=set(), kind="other", ws=1)
    R = [regs(o) for o in ops]
    if op == "s_nop": I["ws"] = int(ops[0]) + 1
    if op.startswith("v_mfma"):
        I["kind"] = "mfma"; I["w"] = R[0]; I["ab"] = R[1] | R[2]; I["c"] = R[3]; I["r"] = I["ab"] | I["c"]
        I["pass"] = 4 if "16x16" in op else 8
    elif op.startswith("v_"):
        I["kind"] = "valu"
        I["w"] = set(R[0]); src = R[1:]
        if op.startswith(("v_add_co", "v_sub_co", "v_addc_co")): I["w"] |= R[1]; src = R[2:]
        for s in src: I["r"] |= s
        if op.startswith(("v_fmac", "v_dot2c", "v_pk_fmac")): I["r"] |= R[0]
        if "permlane" in op: I["r"] |= R[0]; I["w"] |= R[1]
        if "dpp" in op: I["r"] |= R[0]
        if op.startswith("v_cmp") and not R[0]: pass
    elif op.startswith("ds_"):
        I["kind"] = "ds"
        if "read" in op or "rtn" in op or "permute" in op or "swizzle" in op:
            I["w"] = R[0]
            for s in R[1:]: I["r"] |= s
        else:
            for s in R: I["r"] |= s
    elif op.startswith(("buffer_", "global_")):
        I["kind"] = "vmem"
        lds = " lds" in line or "_lds_" in op
        I["lds"] = lds
        if "load" in op and not lds:
            I["w"] = R[0]
            for s in R[1:]: I["r"] |= s
        else:
            for s in R: I["r"] |= s
            if "store" in op and ("x4" in op or "x3" in op):
                I["sdata"] = R[0] if op.startswith("buffer_") else R[1]
    elif op.startswith("s_"):
        I["kind"] = "salu"
        if op.startswith(("s_cmp", "s_bitcmp", "s_waitcnt", "s_barrier", "s_cbranch", "s_branch", "s_nop", "s_sleep", "s_setprio", "s_endpgm")):
            for s in R: I["r"] |= s
        else:
            I["w"] = R[0]
            for s in R[1:]: I["r"] |= s
    return I
def need(p, c):
    n = 0
    vw = {x for x in p["w"] if x[0] in "va"}
    sw = {x for x in p["w"] if x[0] == "s"}
    if p["kind"] == "valu":
        if c["kind"] == "mfma" and vw & c["r"]: n = max(n, 2)
        if c["kind"] == "valu":
            if ("permlane" in c["op"] or "dpp" in c["op"]) and vw & c["r"]: n = max(n, 2)
            if c["op"].startswith(("v_readfirstlane", "v_readlane")) and vw & c["r"]: n = max(n, 1)
            if p["op"].startswith(TRANS) and vw & c["r"]: n = max(n, 1)
            if sw & c["r"]: n = max(n, 2)
            if "sdwa" in p["op"] and vw & c["r"]: n = max(n, 1)
            if p["op"].startswith("v_dot") and vw & (c["r"] | c["w"]) and c["op"] != p["op"]: n = max(n, 3)
        if c["kind"] == "vmem" and sw & c["r"]: n = max(n, 5)
    if p["kind"] == "mfma":
        big = 8 if p["pass"] == 4 else 12
        if c["kind"] == "mfma":
            if vw & c["ab"]: n = max(n, big)
            if vw & c["c"] and vw != c["c"]: n = max(n, big - 2)
            if vw & c["w"] and vw != c["c"]: n = max(n, big)
        elif c["kind"] in ("valu", "ds", "vmem"):
            if vw & (c["r"] | c["w"]): n = max(n, big)
            if c["kind"] == "valu" and p["c"] & c["w"]: n = max(n, 3 if p["pass"] == 4 else 7)
    if p["kind"] == "salu" and ("s", "m0") in p["w"] and c["kind"] == "vmem" and c.get("lds"): n = max(n, 1)
    if p["kind"] == "vmem" and p.get("sdata") and p["sdata"] & c["w"]: n = max(n, 2)
    return n
def check(text):
    ins = [x for x in (parse(l) for l in text.split("\n")) if x]
    bad = []
    for i, c in enumerate(ins):
        d = 0
        for k in range(i - 1, max(-1, i - 14), -1):
            p = ins[k]
            if p["op"] in ("s_branch", "s_endpgm"): break
            n = need(p, c)
            if n > d: bad.append((n, d, p["line"], c["line"]))
            d += p["ws"]
            if d >= 12: break
    return bad
if __name__ == "__main__":
    import sys
    for b in check(open(sys.argv[1]).read()): print(b)
```

```python
import sys
sys.path.insert(0, "work")
from asmlib import *

NAME = "recurrent_scan__ssm_conv_h3__glu_gated_bilinear__prompt"

F_KV, F_ST, F_CS, F_H, F_Y = 0, 1024, 3072, 7168, 11264
WS_STATS = 0x4000
WS_CSP = 0x8000
WS_PROF = 0x40000
WS_KVT = 0x100000
WS_YT = 0x300000
WS_H = 0x500000
WS_SIZE = 0xB00000
STAGE = 40960
GOFF, UOFF = 16384, 28672
L_KC = 122880
L_U = 139520
L_CS = 148736
L_MU = 149504
L_FLG = 150016
L_E = 150528
L_YL = L_KC
L_XL = L_KC + 8192
L_RED = 0
LDS_BYTES = 163840
FL_XDONE, FL_XPRE, FL_XDMA, FL_YRDY, FL_YB0, FL_YKA, FL_YKB, FL_YFIN = 0, 16, 32, 48, 64, 80, 96, 112
S_Q, S_K, S_V, S_SK, S_SM, S_WG, S_WU, S_WD, S_OUT, S_DBG, S_WS, S_SD = 4, 8, 12, 16, 20, 24, 28, 32, 36, 40, 44, 48
S_XCD, S_J, S_MI, S_FI, S_ROT, S_TT2, S_DB2, S_R2 = 50, 51, 52, 53, 54, 55, 56, 57
SPIN_MAX = 200000


def srdw(a, r, size):
    a(f"s_mov_b32 s{r+2}, {size}\ns_mov_b32 s{r+3}, 0x20000")


def gen(opt=None):
    opt = opt or {}
    prof = opt.get("prof", 0)
    a = Asm()
    nstamp = [0]

    def stamp(k):
        if prof:
            a(f"s_memrealtime s[{76+2*k}:{77+2*k}]\ns_waitcnt lgkmcnt(0)")

    def dump_stamps(role):
        if not prof: return
        lab = a.label("nodump")
        a(f"s_and_b32 s60, s3, 3\ns_cmp_lg_u32 s60, {opt.get('profwave', 0)}\ns_cbranch_scc1 {lab}")
        a(f"s_lshl_b32 s60, s2, 7\ns_add_u32 s60, s60, {WS_PROF + 64*role}\nv_mov_b32 v3, 0\ns_mov_b64 exec, 1")
        for g in range(3):
            for i in range(4):
                a(f"v_mov_b32 v{16+4*g+i}, s{76+2*(4*g+i)}")
            a(f"buffer_store_dwordx4 v[{16+4*g}:{19+4*g}], v3, s[{S_WS}:{S_WS+3}], s60 offen offset:{16*g}")
        a(f"{lab}:")

    def lds_set(addr_v, off):
        a(f"ds_write_b32 v{addr_v}, v13 offset:{off}")

    def lds_wait(addr_v, off, tmp):
        lab = a.label("lw"); out = a.label("lwo")
        a(f"s_mov_b32 s60, 0\n{lab}:")
        a(f"ds_read_b32 v{tmp}, v{addr_v} offset:{off}\ns_add_u32 s60, s60, 1\ns_cmp_gt_u32 s60, {SPIN_MAX*8}\ns_cbranch_scc1 {out}")
        a(f"s_waitcnt lgkmcnt(0)\nv_cmp_eq_u32 vcc, 0, v{tmp}\ns_cbranch_vccnz {lab}")
        a(f"{out}:\ns_waitcnt lgkmcnt(0)")

    def gpoll(addr_v, srd, tmp, first_done=False):
        lab = a.label("gp"); out = a.label("gpo"); chk = a.label("gpc")
        a("s_mov_b32 s60, 0")
        if first_done: a(f"s_branch {chk}")
        a(f"{lab}:")
        a(f"buffer_load_dword v{tmp}, v{addr_v}, s[{srd}:{srd+3}], 0 offen sc1")
        a(f"s_add_u32 s60, s60, 1\ns_cmp_gt_u32 s60, {SPIN_MAX}\ns_cbranch_scc1 {out}")
        a("s_waitcnt vmcnt(0)")
        a(f"{chk}:")
        a(f"v_cmp_ne_u32 vcc, 1, v{tmp}\ns_cbranch_vccnz {lab}")
        a(f"{out}:")

    a("s_cmp_ge_u32 s2, 256\ns_cbranch_scc1 L_end")
    a(f"s_load_dwordx2 s[{S_Q}:{S_Q+1}], s[0:1], 0")
    a(f"s_load_dwordx2 s[{S_WG}:{S_WG+1}], s[0:1], 56")
    a(f"s_load_dwordx2 s[{S_WU}:{S_WU+1}], s[0:1], 64")
    a(f"s_load_dwordx2 s[{S_WS}:{S_WS+1}], s[0:1], 96")
    if prof: a("s_memrealtime s[76:77]")
    a("v_lshrrev_b32 v1, 6, v0\nv_and_b32 v0, 63, v0")
    a(f"s_and_b32 s{S_XCD}, s2, 7\ns_lshr_b32 s{S_J}, s2, 3")
    a("v_readfirstlane_b32 s3, v1")
    a(f"s_and_b32 s58, s2, 1\ns_and_b32 s{S_DB2}, s{S_J}, 7\ns_lshl3_add_u32 s{S_MI}, s58, s{S_DB2}")
    a(f"s_lshr_b32 s59, s{S_XCD}, 1\ns_lshr_b32 s60, s2, 6\ns_lshl2_add_u32 s{S_FI}, s59, s60")
    a(f"s_lshl1_add_u32 s61, s60, s{S_DB2}\ns_and_b32 s{S_ROT}, s61, 7")
    a(f"s_lshl2_add_u32 s{S_TT2}, s{S_XCD}, s60")
    a(f"s_mul_i32 s{S_R2}, s61, 11\ns_lshr_b32 s{S_R2}, s{S_R2}, 2")
    srdw(a, S_Q, 2097152)
    srdw(a, S_WS, WS_SIZE)
    a("s_cmp_lt_u32 s3, 4\ns_cbranch_scc1 L_X")

    YW = 62
    a(f"s_sub_u32 s{YW}, s3, 4")
    srdw(a, S_WG, 1409024)
    srdw(a, S_WU, 1409024)
    a(f"s_mul_i32 s63, s{YW}, 44032\ns_mul_i32 s64, s{S_FI}, 192\ns_add_u32 s63, s63, s64\ns_movk_i32 s65, 2752")
    a("s_sub_u32 s64, s65, s64\ns_lshr_b32 s64, s64, 4\ns_cmp_eq_u32 s53, 15\ns_cselect_b32 s64, 0, s64")
    a("v_mov_b32 v11, 0x80000000")
    for i in range(3):
        a(f"v_add_u32 v1, {64*i}, v0\nv_mul_u32_u24 v2, 43691, v1\nv_lshrrev_b32 v2, 19, v2")
        a("v_mul_u32_u24 v3, 12, v2\nv_sub_u32 v1, v1, v3")
        a("v_lshrrev_b32 v3, 2, v2\nv_and_b32 v3, 2, v3\nv_xor_b32 v1, v1, v3")
        a("v_cmp_gt_u32 vcc, s64, v1\nv_mul_u32_u24 v2, s65, v2\nv_lshl_add_u32 v2, v1, 4, v2\nv_add_u32 v2, s63, v2")
        a(f"v_cndmask_b32 v{8+i}, v11, v2, vcc")
    a("v_lshrrev_b32 v1, 3, v0\nv_and_b32 v2, 7, v0\nv_lshrrev_b32 v3, 4, v0\nv_xor_b32 v2, v2, v3\nv_lshlrev_b32 v2, 4, v2\nv_lshl_add_u32 v4, v1, 10, v2")
    a(f"s_lshl2_add_u32 s63, s{S_MI}, s{YW}\ns_lshl_b32 s63, s63, 15\ns_cmp_eq_u32 s{S_FI}, 15\ns_cselect_b32 s63, 0x80000000, s63")
    a("v_add_u32 v4, s63, v4\nv_xor_b32 v5, 64, v4\nv_add_u32 v5, 8192, v5\nv_add_u32 v6, 16384, v4\nv_add_u32 v7, 16384, v5")
    a(f"s_lshl_b32 s63, s{YW}, 12\ns_mul_i32 s64, s{YW}, 3072\ns_add_u32 s64, s64, {GOFF}")
    a(f"s_mov_b32 s65, s{S_ROT}")

    def chunk(c):
        base = (c % 3) * STAGE
        a(f"s_lshl_b32 s66, s65, 7\ns_mul_i32 s67, s65, 176128\ns_add_u32 m0, s64, {base}\ns_add_u32 s65, s65, 1")
        for i in range(3):
            a(f"buffer_load_dwordx4 v{8+i}, s[{S_WG}:{S_WG+3}], s67 offen lds")
            a(f"s_add_u32 m0, m0, {UOFF-GOFF}\ns_nop 0")
            a(f"buffer_load_dwordx4 v{8+i}, s[{S_WU}:{S_WU+3}], s67 offen lds")
            if i < 2: a(f"s_sub_u32 m0, m0, {UOFF-GOFF-1024}\ns_nop 0")
        a(f"s_add_u32 m0, s63, {base}\ns_and_b32 s65, s65, 7")
        for i in range(4):
            a(f"buffer_load_dwordx4 v{4+i}, s[{S_Q}:{S_Q+3}], s66 offen lds")
            if i < 3: a("s_add_u32 m0, m0, 1024\ns_nop 0")

    a("s_waitcnt lgkmcnt(0)")
    stamp(1)
    chunk(0)
    a(f"s_load_dwordx2 s[{S_SM}:{S_SM+1}], s[0:1], 32\ns_load_dwordx2 s[{S_SD}:{S_SD+1}], s[0:1], 40")
    a(f"s_load_dwordx2 s[{S_WD}:{S_WD+1}], s[0:1], 72\ns_load_dwordx2 s[{S_DBG}:{S_DBG+1}], s[0:1], 88")
    chunk(1)
    srdw(a, S_SM, 2097152); srdw(a, S_WD, 1409024); srdw(a, S_DBG, 256)
    a("v_and_b32 v1, 15, v0\nv_lshrrev_b32 v2, 4, v0\nv_mov_b32 v13, 1")
    CH, DH, DCH = 68, 69, 70
    a(f"s_lshr_b32 s{CH}, s{YW}, 1\ns_and_b32 s{DH}, s{YW}, 1")
    a(f"s_and_b32 s60, s{S_J}, 15\ns_lshl1_add_u32 s60, s60, s{CH}\ns_lshr_b32 s61, s{S_J}, 4\ns_lshl1_add_u32 s60, s60, s61")
    a(f"s_lshl_b32 s61, s{S_XCD}, 6\ns_add_u32 s{DCH}, s60, s61")
    a("v_lshrrev_b32 v3, 2, v1\nv_lshl_add_u32 v3, v2, 3, v3\nv_mul_u32_u24 v3, 192, v3\nv_and_b32 v14, 3, v1\nv_lshl_add_u32 v3, v14, 3, v3")
    a(f"s_mul_i32 s60, s{CH}, {UOFF-GOFF}\ns_add_u32 s60, s60, {GOFF}\nv_add_u32 v3, s60, v3")
    a(f"v_and_b32 v14, 1, v2\ns_mul_i32 s60, s{DH}, 3\ns_add_u32 s61, s60, 1")
    a("v_xor_b32 v15, s61, v14\nv_xor_b32 v14, s60, v14\nv_lshl_add_u32 v14, v14, 5, v3\nv_lshl_add_u32 v15, v15, 5, v3")
    for i in range(4): a(f"v_mov_b32 v{16+i}, 0x3f803f80")
    a("s_waitcnt lgkmcnt(0)")
    a(f"s_lshl_b32 s60, s{DCH}, 12\ns_load_dword s71, s[{S_SM}:{S_SM+1}], s60")
    a(f"s_andn2_b32 s61, s{DCH}, 1\ns_lshl_b32 s61, s61, 1\ns_load_dword s72, s[{S_SD}:{S_SD+1}], s61")
    a(f"s_and_b32 s60, s2, 1\ns_lshl1_add_u32 s73, s{S_FI}, s60")
    a(f"s_lshl3_add_u32 s60, s73, s{S_DB2}\ns_mul_i32 s60, s60, 768\ns_mul_i32 s61, s{YW}, 192\ns_add_u32 s60, s60, s61\ns_add_u32 s74, s60, {WS_CSP}")
    a("v_lshlrev_b32 v12, 4, v2")
    a("s_waitcnt vmcnt(10) lgkmcnt(0)")
    stamp(2)
    a("s_barrier")
    for jj in range(3):
        for ks in range(2):
            for h in range(2):
                r = 32 + 8 * jj + 4 * ks + 2 * h
                a(f"ds_read_b64_tr_b16 {vr(r,2)}, v{15 if jj == 1 else 14} offset:{ks*6144 + h*768 + (64 if jj == 2 else 0)}")
    a("s_waitcnt lgkmcnt(0)")
    for ks in range(2):
        for jj in range(3):
            c = 20 + 4 * jj
            a(f"v_mfma_f32_16x16x32_bf16 {vr(c,4)}, {vr(32+8*jj+4*ks,4)}, v[16:19], {'0' if ks == 0 else vr(c,4)}")
    a("s_mov_b32 exec_lo, 0x00010001\ns_mov_b32 exec_hi, 0x00010001\ns_nop 5")
    for jj in range(3):
        a(f"buffer_store_dwordx4 {vr(20+4*jj,4)}, v12, s[{S_WS}:{S_WS+3}], s74 offen offset:{64*jj} sc1")
    a("s_mov_b64 exec, -1")
    chunk(2)
    a("v_and_b32 v12, 3, v0\nv_lshlrev_b32 v12, 2, v12")
    a(f"s_lshl_b32 s60, s{S_XCD}, 7\ns_lshl_b32 s61, s{S_MI}, 7\ns_add_u32 s61, s61, {F_ST}\ns_lshl_b32 s66, s73, 7\ns_add_u32 s66, s66, {F_CS}")
    a("v_lshlrev_b32 v3, 2, v0\nv_add_u32 v15, s60, v3")
    a("v_add_u32 v16, s61, v3\nv_subrev_u32 v16, 128, v16\nv_cmp_le_u32 vcc, 32, v0\nv_and_b32 v3, 28, v3\nv_add_u32 v17, s66, v3\nv_cndmask_b32 v15, v15, v16, vcc")
    a("v_cmp_le_u32 vcc, 48, v0")
    a(f"s_lshl2_add_u32 s60, s{S_J}, s60\ns_lshl2_add_u32 s61, s{S_FI}, s61\ns_lshl2_add_u32 s66, s{S_DB2}, s66")
    a("v_cndmask_b32 v15, v15, v17, vcc")
    a("v_mov_b32 v14, s60\nv_writelane_b32 v14, s61, 1\nv_writelane_b32 v14, s66, 2")
    a("s_waitcnt vmcnt(13)\ns_barrier")
    a(f"buffer_load_dword v16, v12, s[{S_DBG}:{S_DBG+3}], 0 offen sc1")
    chunk(3)
    a("s_waitcnt vmcnt(10)\ns_barrier")
    a(f"s_cmp_lg_u32 s{YW}, 0\ns_cbranch_scc1 L_ynosig")
    gpoll(12, S_DBG, 16, first_done=True)
    a("s_mov_b64 exec, 7")
    a(f"buffer_store_dword v13, v14, s[{S_WS}:{S_WS+3}], 0 offen sc1")
    a("s_mov_b64 exec, -1")
    a("L_ynosig:")
    stamp(3)
    chunk(4)
    a(f"v_mov_b32 v16, 0\nv_lshlrev_b32 v3, 2, v0\ns_lshl_b32 s60, s{YW}, 8\ns_add_u32 s60, s60, {L_U + 8192}\nv_add_u32 v17, s60, v3")
    a("ds_write_b32 v17, v16")
    a(f"s_mul_i32 s75, s{YW}, 4160\ns_add_u32 s75, s75, {L_KC}\nv_add_u32 v17, s75, v3\ns_lshl_b32 s71, s71, 16\nv_writelane_b32 v16, s71, 7")
    a(f"s_lshr_b32 s60, 255, s{DH}\ns_mov_b32 exec_lo, s60\ns_mov_b32 exec_hi, 0")
    a("ds_write_b32 v17, v16\ns_mov_b64 exec, -1")
    a("s_waitcnt vmcnt(10)\ns_barrier")
    chunk(5)
    a("v_lshlrev_b32 v18, 2, v0\nv_cmp_gt_u32 vcc, 48, v0")
    a(f"s_mul_i32 s74, s73, 6144\ns_mul_i32 s61, s{YW}, 192\ns_add_u32 s74, s74, s61\ns_add_u32 s74, s74, {WS_CSP}")
    a("v_cndmask_b32 v18, v11, v18, vcc")
    a(f"s_lshl2_add_u32 s60, s{S_MI}, s{YW}\ns_lshl_b32 s60, s60, 8\ns_add_u32 s60, s60, {WS_STATS}\nv_and_b32 v19, 31, v0\nv_lshl_add_u32 v19, v19, 3, s60")
    a(f"s_lshl_b32 s60, s{S_XCD}, 18\ns_lshl_b32 s61, s{YW}, 16\ns_sub_u32 s60, s60, s61\ns_lshl_b32 s61, s{S_J}, 5\ns_add_u32 s60, s60, s61\ns_add_u32 s60, s60, {WS_KVT + 255*1024}")
    a("v_xor_b32 v3, v0, v2\nv_and_b32 v3, 1, v3\nv_lshl_add_u32 v20, v3, 4, s60\nv_lshrrev_b32 v3, 1, v0\nv_lshlrev_b32 v3, 10, v3\nv_sub_u32 v20, v20, v3\nv_subrev_u32 v21, 32768, v20")
    a(f"s_lshl_b32 s60, s{DCH}, 12\ns_xor_b32 s61, s{DH}, 1\ns_lshl1_add_u32 s60, s61, s60\nv_lshl_add_u32 v22, v0, 4, s60")
    a(f"s_lshl2_add_u32 s75, s61, s75\ns_add_u32 s75, s75, 28")
    a(f"v_and_b32 v3, 1, v2\ns_lshl_b32 s60, s{DH}, 1\nv_or_b32 v3, s60, v3\nv_lshlrev_b32 v3, 1, v3\nv_and_b32 v23, 7, v0\nv_xor_b32 v23, v23, v3\nv_lshlrev_b32 v23, 4, v23")
    a(f"v_lshrrev_b32 v3, 3, v0\nv_lshl_add_u32 v23, v3, 10, v23\ns_lshl_b32 s60, s{YW}, 13\ns_lshl_b32 s61, s{S_DB2}, 7\ns_add_u32 s60, s60, s61\nv_add_u32 v23, s60, v23")
    a("s_waitcnt vmcnt(10)\ns_barrier")
    chunk(6)
    a(f"s_mul_i32 s60, s{CH}, 8320\ns_lshl_b32 s61, s{DH}, 8\ns_add_u32 s60, s60, s61\ns_add_u32 s60, s60, {L_KC}")
    a("v_and_b32 v3, 1, v1\nv_mul_u32_u24 v24, 4158, v3\nv_lshl_add_u32 v24, v1, 1, v24\nv_lshl_add_u32 v24, v2, 4, v24\nv_add_u32 v24, s60, v24")
    a("v_add_u32 v25, 1024, v24\nv_add_u32 v26, 2048, v24\nv_add_u32 v27, 3072, v24")
    a(f"s_lshl_b32 s60, s{DH}, 4\ns_add_u32 s60, s60, 30\nv_lshlrev_b32 v3, 1, v1\nv_sub_u32 v3, v2, v3\nv_add_u32 v3, s60, v3")
    for dl in range(4):
        a(f"v_add_u32 v16, {4*dl}, v3\nv_bfe_u32 v17, v16, 3, 1\nv_xor_b32 v17, s{CH}, v17\nv_lshlrev_b32 v17, 4, v17\nv_lshl_add_u32 v17, v16, 5, v17\nv_add_u32 v{28+dl}, {L_U}, v17")
    a("s_waitcnt vmcnt(10)\ns_barrier")
    a(f"buffer_load_dword v16, v15, s[{S_WS}:{S_WS+3}], 0 offen sc1")
    chunk(7)
    a("s_waitcnt vmcnt(10)")
    stamp(4)
    gpoll(15, S_WS, 16, first_done=True)
    stamp(5)
    a("s_add_u32 s61, s74, 3072")
    for r in range(8):
        a(f"buffer_load_dword v{32+r}, v18, s[{S_WS}:{S_WS+3}], s{74 if r < 4 else 61} offen offset:{768*(r%4)} sc1")
    a(f"buffer_load_dword v40, v19, s[{S_WS}:{S_WS+3}], 0 offen sc1")
    a(f"s_lshl_b32 s60, s{YW}, 11\ns_add_u32 m0, s60, {L_U}\ns_nop 0")
    a(f"buffer_load_dwordx4 v20, s[{S_WS}:{S_WS+3}], 0 offen sc1 lds")
    a("s_add_u32 m0, m0, 1024\ns_nop 0")
    a(f"buffer_load_dwordx4 v21, s[{S_WS}:{S_WS+3}], 0 offen sc1 lds")
    a("s_mov_b32 m0, s75\ns_nop 0")
    for i in range(4):
        a(f"buffer_load_dwordx4 v22, s[{S_SM}:{S_SM+3}], 0 offen offset:{1024*i} lds")
    a("s_barrier")
    a(f"s_mul_i32 s60, s{YW}, 192\ns_add_u32 s60, s60, {L_CS}\nv_lshl_add_u32 v16, v0, 2, s60")
    a(f"s_lshl_b32 s60, s{YW}, 7\ns_add_u32 s60, s60, {L_MU}\nv_and_b32 v17, 31, v0\nv_lshl_add_u32 v17, v17, 2, s60")
    a("s_waitcnt vmcnt(6)")
    a("v_add_f32 v32, v32, v33\nv_add_f32 v34, v34, v35\nv_add_f32 v36, v36, v37\nv_add_f32 v38, v38, v39\nv_add_f32 v32, v32, v34\nv_add_f32 v36, v36, v38\nv_add_f32 v32, v32, v36")
    a("ds_write_b32 v17, v40")
    a("s_mov_b32 exec_hi, 0xffff\nds_write_b32 v16, v32\ns_mov_b64 exec, -1")
    a("s_waitcnt lgkmcnt(0)")
    stamp(6)
    a("s_barrier")
    a(f"s_lshl_b32 s63, s{YW}, 10\ns_add_u32 s63, s63, {2*STAGE}")
    for kh in range(2):
        n = 22 - kh
        a(f"s_sub_u32 s60, s{S_R2}, {n}\ns_cselect_b32 s60, s{S_R2}, s60")
        for i in range(5):
            a(f"s_add_u32 s61, s60, {22*kh}\ns_lshl_b32 s61, s61, 15\ns_add_u32 m0, s63, {kh*20480 + i*4096}\ns_add_u32 s60, s60, 1")
            a(f"buffer_load_dwordx4 v23, s[{S_WD}:{S_WD+3}], s61 offen lds")
            if i < 4: a(f"s_cmp_eq_u32 s60, {n}\ns_cselect_b32 s60, 0, s60")
    a(f"s_lshl2_add_u32 s60, s{YW}, {L_FLG}\nv_mov_b32 v14, s60\ns_xor_b32 s60, s60, 4\nv_mov_b32 v12, s60\nv_and_b32 v15, 3, v0\nv_lshlrev_b32 v15, 2, v15\nv_add_u32 v15, {L_FLG}, v15")
    a("s_waitcnt vmcnt(10)")
    lds_set(14, FL_YRDY)
    lds_wait(15, FL_YRDY, 16)
    stamp(7)
    CACC = 224
    def AF(st, g): return 32 + 64 * st + 4 * g
    def BF(st, m): return 64 + 64 * st + 4 * m
    t = LgkmTracker(a)
    def conv_reads(dl):
        st = dl & 1
        out = []
        for g in range(8):
            o = 128 * (g & 1) + 16 * dl
            out.append(lambda g=g, o=o: t.issue(f"ds_read2_b32 {vr(AF(st,g),2)}, v{24+(g>>1)} offset0:{o} offset1:{o+1}", ("a", st, g, 0)))
            out.append(lambda g=g, o=o: t.issue(f"ds_read2_b32 {vr(AF(st,g)+2,2)}, v{24+(g>>1)} offset0:{o+2} offset1:{o+3}", ("a", st, g, 1)))
            out.append(lambda g=g: t.issue(f"ds_read_b128 {vr(BF(st,g),4)}, v{28+dl} offset:{(7-g)*1024}", ("b", st, g)))
        return out
    pend = conv_reads(0)
    for f in pend[:12]: f()
    pend = pend[12:]
    for dl in range(4):
        st = dl & 1
        if dl < 3: pend = pend + conv_reads(dl + 1)
        m = 0
        for N in range(8):
            for g in range(N + 1):
                M = N - g
                t.need({("a", st, g, 0), ("a", st, g, 1), ("b", st, M)})
                c = CACC + 4 * N
                a(f"v_mfma_f32_16x16x32_bf16 {vr(c,4)}, {vr(AF(st,g),4)}, {vr(BF(st,M),4)}, {'0' if (dl == 0 and g == 0) else vr(c,4)}")
                if pend: pend.pop(0)()
                m += 1
                if dl == 3 and m == 4:
                    t.drain()
                    lds_set(14, FL_YKA)
                    t.q.append(("flag",))
        assert not pend
        if dl == opt.get("b0wait", 2):
            a("s_waitcnt vmcnt(0)")
            lds_set(14, FL_YB0)
            t.q.append(("flag",))
    t.drain()
    stamp(8)
    lds_wait(12, FL_YKA, 16)
    a(f"s_mul_i32 s60, s{CH}, 8320\ns_add_u32 s60, s60, {L_KC}\ns_lshl_b32 s61, s{DH}, 12\ns_add_u32 s63, s60, s61\ns_xor_b32 s61, s61, 4096\ns_add_u32 s61, s60, s61")
    a("v_lshl_add_u32 v16, v0, 4, s63\nv_lshl_add_u32 v17, v0, 4, s61")
    a(f"s_lshl_b32 s60, s{DH}, 7\ns_sub_u32 s60, {255-96}, s60\nv_lshrrev_b32 v3, 1, v2\nv_lshl_add_u32 v3, v1, 1, v3\nv_sub_u32 v3, s60, v3")
    a(f"v_bfe_u32 v18, v3, 3, 1\nv_xor_b32 v18, s{CH}, v18\nv_lshlrev_b32 v18, 4, v18\nv_lshl_add_u32 v18, v3, 5, v18")
    a(f"v_and_b32 v3, 1, v2\nv_xor_b32 v3, 1, v3\nv_lshl_add_u32 v18, v3, 3, v18\nv_add_u32 v18, {L_U}, v18")
    a(f"s_cmp_eq_u32 s{DH}, 0\ns_cbranch_scc1 L_ysend0")
    for i in range(4): a(f"ds_write_b128 v16, {vr(CACC+4*i,4)} offset:{1024*i}")
    a("s_waitcnt lgkmcnt(0)")
    for i in range(16): a(f"v_mov_b32 v{CACC+i}, v{CACC+16+i}")
    a("s_branch L_ysent")
    a("L_ysend0:")
    for i in range(4): a(f"ds_write_b128 v16, {vr(CACC+16+4*i,4)} offset:{1024*i}")
    a("s_waitcnt lgkmcnt(0)")
    a("L_ysent:")
    lds_set(14, FL_YKB)
    for i in range(4): a(f"ds_read_b64 {vr(48+2*i,2)}, v18 offset:{(3-i)*1024}")
    a(f"s_and_b32 s60, s{DCH}, 1\ns_lshl_b32 s60, s60, 4\ns_lshr_b32 s72, s72, s60\ns_lshl_b32 s72, s72, 16")
    lds_wait(12, FL_YKB, 19)
    for i in range(4): a(f"ds_read_b128 {vr(32+4*i,4)}, v17 offset:{1024*i}")
    for i in range(4):
        u0, u1 = 48 + 2 * i, 49 + 2 * i
        c = CACC + 4 * i
        a(f"v_and_b32 v56, 0xffff0000, v{u1}\nv_lshlrev_b32 v57, 16, v{u1}\nv_and_b32 v58, 0xffff0000, v{u0}\nv_lshlrev_b32 v59, 16, v{u0}")
        for r in range(4): a(f"v_fma_f32 v{c+r}, v{56+r}, s72, v{c+r}")
    a(f"s_lshl_b32 s60, s{DCH}, 12\ns_lshl_b32 s61, s{DH}, 11\ns_add_u32 s60, s60, s61\ns_add_u32 s60, s60, {WS_YT}\nv_lshlrev_b32 v3, 4, v0")
    a("s_waitcnt lgkmcnt(0)")
    lds_set(14, FL_YFIN)
    for pr in range(2):
        d = 60 + 4 * pr
        for b in range(2):
            i = 2 * pr + b; c = CACC + 4 * i; p = 32 + 4 * i
            a(f"v_pk_add_f32 {vr(c,2)}, {vr(c,2)}, {vr(p,2)}\nv_pk_add_f32 {vr(c+2,2)}, {vr(c+2,2)}, {vr(p+2,2)}")
            a(f"v_cvt_pk_bf16_f32 v{d+2*b}, v{c}, v{c+1}\nv_cvt_pk_bf16_f32 v{d+2*b+1}, v{c+2}, v{c+3}")
        a(f"s_nop 1\nv_permlane16_swap_b32 v{d}, v{d+2}\nv_permlane16_swap_b32 v{d+1}, v{d+3}")
        a(f"buffer_store_dwordx4 {vr(d,4)}, v3, s[{S_WS}:{S_WS+3}], s60 offen offset:{1024*pr} sc1")
    a(f"s_lshl1_add_u32 s60, s{S_XCD}, s{DH}\ns_lshl_b32 s60, s60, 8\ns_lshl1_add_u32 s61, s{S_J}, s{CH}\ns_lshl2_add_u32 s60, s61, s60\ns_add_u32 s60, s60, {F_Y}\nv_mov_b32 v16, s60")
    a(f"s_lshr_b32 s60, s{S_TT2}, 4\ns_lshl1_add_u32 s60, s{S_DB2}, s60\ns_lshl_b32 s60, s60, 8\ns_add_u32 s60, s60, {F_Y}\nv_lshl_add_u32 v17, v0, 2, s60")
    a("v_and_b32 v3, 7, v0\nv_xor_b32 v3, v3, v2\nv_lshlrev_b32 v3, 4, v3\nv_lshrrev_b32 v19, 3, v0\nv_lshl_add_u32 v20, v19, 10, v3")
    a(f"s_lshl2_add_u32 s60, s{S_TT2}, s{YW}\ns_lshl_b32 s60, s60, 14\ns_lshl_b32 s61, s{S_DB2}, 7\ns_add_u32 s60, s60, s61\nv_add_u32 v20, s60, v20\nv_xor_b32 v21, 64, v20\nv_add_u32 v21, 8192, v21")
    a("v_and_b32 v3, 3, v0\nv_xor_b32 v3, v3, v2\nv_lshlrev_b32 v3, 4, v3\nv_lshl_add_u32 v22, v19, 12, v3\nv_bfe_u32 v3, v0, 2, 1\nv_lshl_add_u32 v22, v3, 9, v22")
    a(f"s_lshl2_add_u32 s60, s{S_DB2}, s{YW}\ns_lshl_b32 s60, s60, 16\ns_lshr_b32 s61, s{S_TT2}, 3\ns_lshl_b32 s61, s61, 10\ns_add_u32 s60, s60, s61")
    a(f"s_and_b32 s61, s{S_TT2}, 7\ns_lshl_b32 s61, s61, 6\ns_add_u32 s60, s60, s61\ns_add_u32 s60, s60, {WS_YT}\nv_add_u32 v22, s60, v22\nv_add_u32 v23, 32768, v22")
    a("s_waitcnt vmcnt(0)\ns_mov_b64 exec, 1")
    a(f"buffer_store_dword v13, v16, s[{S_WS}:{S_WS+3}], 0 offen sc1")
    a("s_mov_b64 exec, -1")
    stamp(9)
    lds_wait(15, FL_YFIN, 16)
    a(f"s_lshl_b32 s63, s{YW}, 11\ns_add_u32 m0, s63, {L_XL}\ns_nop 0")
    a(f"buffer_load_dwordx4 v20, s[{S_Q}:{S_Q+3}], 0 offen lds")
    a("s_add_u32 m0, m0, 1024\ns_nop 0")
    a(f"buffer_load_dwordx4 v21, s[{S_Q}:{S_Q+3}], 0 offen lds")
    gpoll(17, S_WS, 16)
    stamp(10)
    a(f"s_add_u32 m0, s63, {L_YL}\ns_nop 0")
    a(f"buffer_load_dwordx4 v22, s[{S_WS}:{S_WS+3}], 0 offen sc1 lds")
    a("s_add_u32 m0, m0, 1024\ns_nop 0")
    a(f"buffer_load_dwordx4 v23, s[{S_WS}:{S_WS+3}], 0 offen sc1 lds")
    a("s_barrier")
    a("s_waitcnt vmcnt(0)")
    stamp(11)
    a("s_barrier")
    dump_stamps(1)
    a("s_endpgm")

    a("L_X:")
    a(f"s_load_dwordx2 s[{S_K}:{S_K+1}], s[0:1], 8\ns_load_dwordx2 s[{S_V}:{S_V+1}], s[0:1], 16\ns_load_dwordx2 s[{S_SK}:{S_SK+1}], s[0:1], 24")
    srdw(a, S_K, 2097152); srdw(a, S_V, 2097152); srdw(a, S_SK, 4096)
    a(f"s_lshl2_add_u32 s60, s{S_J}, s3\ns_lshl_b32 s61, s60, 14\ns_lshl_b32 s62, s{S_XCD}, 7\ns_add_u32 s61, s61, s62")
    a("v_and_b32 v1, 31, v0\nv_lshrrev_b32 v2, 5, v0\nv_lshlrev_b32 v3, 13, v2\nv_lshl_add_u32 v3, v1, 2, v3\nv_add_u32 v4, s61, v3\nv_subrev_u32 v5, 3072, v4")
    a(f"s_lshl_b32 s62, s{S_XCD}, 9\nv_lshl_add_u32 v6, v1, 4, s62")
    a(f"s_lshl4_add_u32 s63, s{S_MI}, s{S_FI}\ns_lshl2_add_u32 s63, s63, s3\ns_lshl_b32 s64, s63, 11\nv_lshlrev_b32 v7, 10, v2\nv_lshl_add_u32 v7, v1, 4, v7\nv_add_u32 v7, s64, v7")
    a("s_movk_i32 s65, 4096")
    a("s_waitcnt lgkmcnt(0)")
    stamp(1)
    for i in range(3): a(f"buffer_load_dword v{16+i}, v5, s[{S_K}:{S_K+3}], 0 offen offset:{1024*i}")
    for i in range(8): a(f"buffer_load_dword v{19+i}, v4, s[{S_K}:{S_K+3}], {'0' if i < 4 else 's65'} offen offset:{1024*(i%4)}")
    a(f"buffer_load_dwordx4 v[36:39], v6, s[{S_SK}:{S_SK+3}], 0 offen")
    for i in range(8): a(f"buffer_load_dword v{28+i}, v4, s[{S_V}:{S_V+3}], {'0' if i < 4 else 's65'} offen offset:{1024*(i%4)}")
    a(f"buffer_load_dwordx4 v[40:43], v7, s[{S_Q}:{S_Q+3}], 0 offen\nbuffer_load_dwordx4 v[44:47], v7, s[{S_Q}:{S_Q+3}], 0 offen offset:512")
    a(f"s_load_dwordx2 s[{S_WD}:{S_WD+1}], s[0:1], 72\ns_load_dwordx2 s[{S_OUT}:{S_OUT+1}], s[0:1], 80\ns_load_dwordx2 s[{S_DBG}:{S_DBG+1}], s[0:1], 88")
    srdw(a, S_WD, 1409024); srdw(a, S_OUT, 2097152); srdw(a, S_DBG, 256)
    ACC, XF, WF = 160, 16, 80
    for r in range(4): a(f"v_mov_b32 v{ACC+r}, 0")
    a("v_mov_b32 v13, 1")
    a(f"v_lshlrev_b32 v8, 2, v1\nv_add_u32 v8, {L_FLG}, v8\nds_write_b32 v8, v{ACC}")
    a("s_cmp_lg_u32 s2, 0\ns_cbranch_scc1 L_noclear")
    a("s_lshl_b32 s61, s3, 12\nv_lshlrev_b32 v8, 4, v0")
    for i in range(4): a(f"buffer_store_dwordx4 {vr(ACC,4)}, v8, s[{S_WS}:{S_WS+3}], s61 offen offset:{1024*i} sc1")
    a("s_lshl_b32 s61, s3, 2\nv_mov_b32 v8, s61\ns_waitcnt vmcnt(0) lgkmcnt(0)\ns_mov_b64 exec, 1")
    a(f"buffer_store_dword v13, v8, s[{S_DBG}:{S_DBG+3}], 0 offen sc1")
    a("s_mov_b64 exec, -1\ns_waitcnt vmcnt(0)")
    a("L_noclear:")
    for r in range(4, 96): a(f"v_mov_b32 v{ACC+r}, 0")
    a(f"s_lshl_b32 s61, s60, 11\ns_lshl_b32 s62, s{S_XCD}, 18\ns_add_u32 s61, s61, s62\ns_add_u32 s61, s61, {WS_KVT}")
    a("v_lshlrev_b32 v8, 10, v2\nv_lshl_add_u32 v8, v1, 4, v8")
    a(f"s_lshl_b32 s64, s63, 4\ns_add_u32 s64, s64, {WS_STATS}\nv_lshlrev_b32 v9, 3, v2")
    a("s_waitcnt vmcnt(10)")
    stamp(2)
    KF, TW, VF, KS = 48, 72, 80, 96
    for i in range(11): a(f"v_lshlrev_b32 v{KF+2*i}, 16, v{16+i}\nv_and_b32 v{KF+2*i+1}, 0xffff0000, v{16+i}")
    for c in range(2):
        for hh in range(2):
            a(f"v_lshlrev_b32 v{TW+4*hh+c}, 16, v{36+2*c+hh}\nv_and_b32 v{TW+4*hh+2+c}, 0xffff0000, v{36+2*c+hh}")
    for i in range(8):
        a(f"v_pk_mul_f32 {vr(KS+2*i,2)}, {vr(KF+2*i,2)}, {vr(TW+6,2)}")
    for jt in (2, 1, 0):
        for i in range(8):
            a(f"v_pk_fma_f32 {vr(KS+2*i,2)}, {vr(KF+2*(i+3-jt),2)}, {vr(TW+2*jt,2)}, {vr(KS+2*i,2)}")
    a("s_waitcnt vmcnt(2)")
    for i in range(8): a(f"v_lshlrev_b32 v{VF+2*i}, 16, v{28+i}\nv_and_b32 v{VF+2*i+1}, 0xffff0000, v{28+i}")
    for i in range(8): a(f"v_pk_mul_f32 {vr(KS+2*i,2)}, {vr(KS+2*i,2)}, {vr(VF+2*i,2)}")
    for c in range(2):
        for m in range(4):
            a(f"v_cvt_pk_bf16_f32 v{16+4*c+m}, v{KS+2*(7-2*m)+c}, v{KS+2*(6-2*m)+c}")
        a(f"buffer_store_dwordx4 {vr(16+4*c,4)}, v8, s[{S_WS}:{S_WS+3}], s61 offen offset:{512*c} sc1")
    a("s_waitcnt vmcnt(2)")
    SF = 48
    for i in range(8): a(f"v_lshlrev_b32 v{SF+2*i}, 16, v{40+i}\nv_and_b32 v{SF+2*i+1}, 0xffff0000, v{40+i}")
    def reduce32(src):
        a(f"v_add_f32 v{src}, v{src}, v{src+1}\ns_nop 1")
        for ctl in ("row_ror:8", "row_ror:4", "row_ror:2", "row_ror:1"):
            a(f"v_add_f32_dpp v{src}, v{src}, v{src} {ctl} row_mask:0xf bank_mask:0xf\ns_nop 1")
        a(f"v_mov_b32 v{src+1}, v{src}\ns_nop 1\nv_permlane16_swap_b32 v{src}, v{src+1}\nv_add_f32 v{src}, v{src}, v{src+1}")
    for i in range(4): a(f"v_pk_add_f32 {vr(64+2*i,2)}, {vr(SF+2*i,2)}, {vr(SF+8+2*i,2)}")
    a("v_pk_add_f32 v[64:65], v[64:65], v[68:69]\nv_pk_add_f32 v[66:67], v[66:67], v[70:71]\nv_pk_add_f32 v[64:65], v[64:65], v[66:67]")
    reduce32(64)
    a("v_mul_f32 v64, 0x3b000000, v64")
    for i in range(8): a(f"v_pk_add_f32 {vr(SF+2*i,2)}, {vr(SF+2*i,2)}, v[64:65] op_sel_hi:[1,0] neg_lo:[0,1] neg_hi:[0,1]")
    a(f"v_pk_mul_f32 v[66:67], {vr(SF,2)}, {vr(SF,2)}\nv_pk_mul_f32 v[68:69], {vr(SF+2,2)}, {vr(SF+2,2)}")
    for i in range(2, 8): a(f"v_pk_fma_f32 {vr(66+2*(i&1),2)}, {vr(SF+2*i,2)}, {vr(SF+2*i,2)}, {vr(66+2*(i&1),2)}")
    a("v_pk_add_f32 v[66:67], v[66:67], v[68:69]")
    reduce32(66)
    a("v_mul_f32 v66, 0x3b000000, v66")
    a("v_cvt_pk_bf16_f32 v66, v64, v66\nv_lshlrev_b32 v64, 16, v66\nv_and_b32 v66, 0xffff0000, v66\nv_add_f32 v66, 0x3727c5ac, v66")
    a("v_cvt_pk_bf16_f32 v66, v66, v66\nv_and_b32 v66, 0xffff0000, v66\nv_sqrt_f32 v66, v66\ns_nop 0")
    a("v_cvt_pk_bf16_f32 v66, v66, v66\nv_and_b32 v66, 0xffff0000, v66\nv_rcp_f32 v65, v66")
    a("s_mov_b32 exec_lo, 1\ns_mov_b32 exec_hi, 1")
    a(f"buffer_store_dwordx2 v[64:65], v9, s[{S_WS}:{S_WS+3}], s64 offen sc1")
    a("s_mov_b64 exec, -1")
    TWs, CWs, C3 = 62, 63, 64
    a(f"s_and_b32 s{TWs}, s3, 1\ns_lshr_b32 s{CWs}, s3, 1\ns_mul_i32 s{C3}, s{CWs}, 3")
    a("v_and_b32 v1, 15, v0\nv_lshrrev_b32 v2, 4, v0")
    a("v_lshrrev_b32 v3, 1, v1\nv_xor_b32 v3, v3, v2\nv_lshlrev_b32 v3, 4, v3\nv_lshl_add_u32 v3, v1, 7, v3")
    a(f"s_lshl_b32 s60, s{TWs}, 13\nv_add_u32 v4, s60, v3\nv_xor_b32 v5, 64, v4")
    a("v_lshrrev_b32 v3, 2, v1\nv_lshl_add_u32 v3, v2, 3, v3\nv_mul_u32_u24 v3, 192, v3\nv_and_b32 v6, 3, v1\nv_lshl_add_u32 v3, v6, 3, v3")
    a(f"v_add_u32 v3, {GOFF}, v3\nv_and_b32 v6, 1, v2\ns_add_u32 s60, s{C3}, 1")
    a(f"v_xor_b32 v7, s60, v6\nv_xor_b32 v6, s{C3}, v6\nv_lshl_add_u32 v6, v6, 5, v3\nv_lshl_add_u32 v7, v7, 5, v3")
    for q in range(4): a(f"v_mov_b32 v{8+q}, v{4+q}")
    a(f"s_mov_b32 s65, {STAGE}\ns_mov_b32 s66, 4")
    a("s_setprio 1")
    a("s_waitcnt lgkmcnt(0)")
    stamp(3)
    a("s_barrier")
    stamp(4)
    t = LgkmTracker(a)
    def xread(st, i, ks):
        r = XF + 32 * st + 8 * i + 4 * ks
        t.issue(f"ds_read_b128 {vr(r,4)}, v{8+ks} offset:{2048*i}", ("x", st, i, ks))
    def wread(j, ks, h):
        jj, gu = j >> 1, j & 1
        r = WF + 8 * (j % 3) + 4 * ks + 2 * h
        off = gu * (UOFF - GOFF) + ks * 6144 + h * 768 + (64 if jj == 2 else 0)
        t.issue(f"ds_read_b64_tr_b16 {vr(r,2)}, v{11 if jj == 1 else 10} offset:{off}", ("w", j % 3, ks, h))
    def first_reads(st):
        out = [lambda: wread(0, 0, 0), lambda: wread(0, 0, 1), lambda: xread(st, 0, 0), lambda: wread(0, 1, 0), lambda: wread(0, 1, 1), lambda: xread(st, 0, 1)]
        for i in range(1, 4):
            for ks in range(2): out.append(lambda i=i, ks=ks: xread(st, i, ks))
        return out
    for f in first_reads(0): f()
    entry_q = list(t.q)
    a(".p2align 3\nL_xloop:")
    BAR = 34
    for st in range(2):
        fill = {}
        def put(slot, f): fill.setdefault(slot, []).append(f)
        for j, base in ((1, 0), (2, 4), (3, 8), (4, 16), (5, 24)):
            k = 0
            for ks in range(2):
                for h in range(2):
                    put(base + k, (lambda j=j, ks=ks, h=h: wread(j, ks, h))); k += 1
        for k, f in enumerate(first_reads(1 - st)): put(BAR + 1 + k, f)
        for q in range(4): put(28 + q, lambda q=q: a(f"v_add_u32 v{8+q}, s65, v{4+q}"))
        put(32, lambda: a(f"s_add_u32 s65, s65, {STAGE}\ns_cmp_eq_u32 s65, {3*STAGE}"))
        put(33, lambda: a("s_cselect_b32 s65, 0, s65"))
        if st == 1:
            put(13, lambda: a("s_sub_u32 s66, s66, 1"))
            put(34, lambda: a("s_cmp_lg_u32 s66, 0"))
        m = 0
        for j in range(6):
            for i in range(4):
                for ks in range(2):
                    t.need({("w", j % 3, ks, 0), ("w", j % 3, ks, 1), ("x", st, i, ks)})
                    c = ACC + 16 * j + 4 * i
                    a(f"v_mfma_f32_16x16x32_bf16 {vr(c,4)}, {vr(WF + 8*(j%3) + 4*ks, 4)}, {vr(XF + 32*st + 8*i + 4*ks, 4)}, {vr(c,4)}")
                    for f in fill.get(m, []): f()
                    if m == BAR:
                        t.q = []
                        a("s_waitcnt vmcnt(0) lgkmcnt(0)")
                        if st == 1: a("s_cbranch_scc0 L_xnobar")
                        a("s_barrier")
                        if st == 1: a("L_xnobar:")
                    m += 1
    assert t.q == entry_q
    a("s_cbranch_scc1 L_xloop")
    a("s_setprio 0")
    a(f"s_lshl2_add_u32 s60, s3, {L_FLG}\nv_mov_b32 v14, s60\ns_xor_b32 s60, s60, 4\nv_mov_b32 v12, s60\nv_and_b32 v15, 3, v0\nv_lshlrev_b32 v15, 2, v15\nv_add_u32 v15, {L_FLG}, v15")
    CSR, MUR = 104, 128
    a(f"s_lshl_b32 s60, s{C3}, 6\ns_add_u32 s60, s60, {L_CS}\nv_lshl_add_u32 v8, v2, 4, s60")
    a(f"s_lshl_b32 s60, s{TWs}, 8\ns_add_u32 s60, s60, {L_MU}\nv_lshl_add_u32 v9, v1, 2, s60")
    a("s_waitcnt lgkmcnt(0)")
    stamp(5)
    lds_set(14, FL_XDONE)
    for i in range(4): a(f"ds_read_b32 v{MUR+i}, v9 offset:{64*i}")
    for jj in range(3):
        for gu in range(2): a(f"ds_read_b128 {vr(CSR+8*jj+4*gu,4)}, v8 offset:{384*gu+64*jj}")
    a("v_and_b32 v3, 1, v2\nv_mul_u32_u24 v3, 44032, v3\nv_lshrrev_b32 v10, 1, v2\nv_lshl_add_u32 v3, v10, 8, v3\nv_lshl_add_u32 v3, v1, 4, v3")
    a(f"s_lshl1_add_u32 s67, s{S_MI}, s{TWs}\ns_mul_i32 s60, s67, 176128\ns_mul_i32 s68, s{S_FI}, 6\ns_add_u32 s68, s68, s{C3}")
    a(f"s_lshl_b32 s61, s68, 9\ns_add_u32 s60, s60, s61\ns_add_u32 s60, s60, {WS_H}\ns_add_u32 s61, s60, 88064")
    for jj in range(3):
        a(f"s_cmp_ge_u32 s68, {86 - jj}\ns_cbranch_scc1 L_xstored")
        a(f"s_waitcnt lgkmcnt({4 - 2*jj})")
        for ip in range(2):
            d = 16 + 8 * jj + 4 * ip
            for b in range(2):
                i = 2 * ip + b
                g = ACC + 32 * jj + 4 * i; u = g + 16
                mu = f"{vr(MUR + 2*ip, 2)}"
                sel = f"op_sel:[{b},0,0] op_sel_hi:[{b},1,1] neg_lo:[1,0,0] neg_hi:[1,0,0]"
                for hh in range(2):
                    a(f"v_pk_fma_f32 {vr(g+2*hh,2)}, {mu}, {vr(CSR+8*jj+2*hh,2)}, {vr(g+2*hh,2)} {sel}")
                    a(f"v_pk_fma_f32 {vr(u+2*hh,2)}, {mu}, {vr(CSR+8*jj+4+2*hh,2)}, {vr(u+2*hh,2)} {sel}")
                a(f"v_pk_mul_f32 {vr(g,2)}, {vr(g,2)}, {vr(u,2)}\nv_pk_mul_f32 {vr(g+2,2)}, {vr(g+2,2)}, {vr(u+2,2)}")
                a(f"v_cvt_pk_bf16_f32 v{d+2*b}, v{g}, v{g+1}\nv_cvt_pk_bf16_f32 v{d+2*b+1}, v{g+2}, v{g+3}")
            a(f"s_nop 1\nv_permlane16_swap_b32 v{d}, v{d+2}\nv_permlane16_swap_b32 v{d+1}, v{d+3}")
            a(f"buffer_store_dwordx4 {vr(d,4)}, v3, s[{S_WS}:{S_WS+3}], s{60 if ip == 0 else 61} offen offset:{512*jj} sc1")
    a("L_xstored:")
    TH, KH = TWs, CWs
    a(f"s_lshl_b32 s60, s67, 7\ns_lshl1_add_u32 s61, s{S_FI}, s{CWs}\ns_lshl2_add_u32 s60, s61, s60\ns_add_u32 s60, s60, {F_H}\nv_mov_b32 v10, s60")
    a(f"s_lshl_b32 s60, s{S_TT2}, 7\ns_mul_i32 s61, s{KH}, 56\ns_add_u32 s60, s60, s61\ns_add_u32 s60, s60, {F_H}\nv_min_u32 v11, 14, v0\nv_lshl_add_u32 v11, v11, 2, s60")
    a("v_and_b32 v3, 1, v2\nv_lshlrev_b32 v3, 1, v3\nv_and_b32 v8, 7, v0\nv_xor_b32 v8, v8, v3\nv_lshlrev_b32 v8, 4, v8\nv_lshrrev_b32 v3, 3, v0\nv_lshl_add_u32 v8, v3, 10, v8")
    a(f"s_lshl_b32 s60, s{TH}, 14\ns_lshl_b32 s61, s{S_DB2}, 7\ns_add_u32 s60, s60, s61\nv_add_u32 v8, s60, v8\nv_xor_b32 v9, 64, v8\nv_add_u32 v9, 8192, v9")
    a("v_lshrrev_b32 v3, 2, v1\nv_lshl_add_u32 v3, v2, 3, v3\nv_lshlrev_b32 v4, 7, v3\nv_and_b32 v3, 3, v1\nv_lshl_add_u32 v4, v3, 3, v4")
    a("v_and_b32 v3, 1, v2\nv_lshlrev_b32 v3, 1, v3\nv_lshrrev_b32 v5, 3, v1\nv_or_b32 v3, v3, v5\nv_lshl_add_u32 v4, v3, 5, v4")
    a(f"s_mul_i32 s69, s{KH}, 20480\ns_add_u32 s60, s69, {2*STAGE}\nv_add_u32 v4, s60, v4")
    a("v_xor_b32 v5, 32, v4\nv_xor_b32 v6, 64, v4\nv_xor_b32 v7, 96, v4")
    NS, S0, R0 = 70, 71, 72
    a(f"s_sub_u32 s{NS}, 22, s{KH}\ns_mul_i32 s{S0}, s{KH}, 22\ns_sub_u32 s60, s{S_R2}, s{NS}\ns_cselect_b32 s{R0}, s{S_R2}, s60")
    a("s_waitcnt vmcnt(0) lgkmcnt(0)\ns_mov_b64 exec, 1")
    a(f"buffer_store_dword v13, v10, s[{S_WS}:{S_WS+3}], 0 offen sc1")
    a("s_mov_b64 exec, -1")
    stamp(6)
    lds_wait(15, FL_XDONE, 16)
    def step_adv(reg, k):
        a(f"s_add_u32 s{reg}, s{reg}, {k}\ns_sub_u32 s60, s{reg}, s{NS}\ns_cselect_b32 s{reg}, s{reg}, s60")
    def wd_dma(ldsbase_s, ldsoff):
        a(f"s_add_u32 s61, s73, s{S0}\ns_lshl_b32 s61, s61, 15\ns_add_u32 m0, s{ldsbase_s}, {ldsoff}\ns_nop 0")
        a(f"buffer_load_dwordx4 v8, s[{S_WD}:{S_WD+3}], s61 offen lds")
        a("s_add_u32 m0, m0, 1024\ns_nop 0")
        a(f"buffer_load_dwordx4 v9, s[{S_WD}:{S_WD+3}], s61 offen lds")
    a(f"s_lshl_b32 s60, s{TH}, 11\ns_add_u32 s74, s69, s60\ns_lshl_b32 s61, s{KH}, 12\ns_add_u32 s75, s60, s61\ns_mov_b32 s68, s60\ns_mov_b32 s73, s{R0}")
    step_adv(73, 5)
    for i in range(5, 15):
        wd_dma(74, ((i - 5) // 5) * STAGE + ((i - 5) % 5) * 4096)
        step_adv(73, 1)
    wd_dma(75, L_E)
    step_adv(73, 1)
    a(f"s_cmp_lg_u32 s{KH}, 0\ns_cbranch_scc1 L_xno21\ns_mov_b32 s67, s73")
    step_adv(73, 5)
    wd_dma(68, L_E + 8192)
    a("s_mov_b32 s73, s67\nL_xno21:")
    lds_wait(15, FL_YB0, 16)
    stamp(7)
    PH, DB, HF, A2 = 144, 112, 16, 224
    def wdread(dst, dt, h, off, tag):
        t.issue(f"ds_read_b64_tr_b16 {vr(dst + 4*dt + 2*h, 2)}, v{4+dt} offset:{off + 512*h}", tag)
    t = LgkmTracker(a)
    for i in range(5):
        for dt in range(4):
            for h in range(2): wdread(PH + 16 * i, dt, h, 4096 * i, ("p",))
    t.drain()
    lds_set(14, FL_XPRE)
    lds_wait(12, FL_XPRE, 16)
    for i in range(16, 21):
        wd_dma(74, 2 * STAGE + (i - 16) * 4096)
        if i < 20: step_adv(73, 1)
    a(f"s_lshl1_add_u32 s60, s{S_TT2}, s{TH}\ns_mul_i32 s61, s60, 88064\ns_lshl_b32 s67, s{S0}, 10\ns_add_u32 s61, s61, s67\ns_add_u32 s61, s61, {WS_H}")
    a("v_lshl_add_u32 v8, v0, 4, s61\nv_add_u32 v9, 44032, v8")
    a(f"s_lshl1_add_u32 s75, s60, s{KH}\ns_lshl_b32 s61, s75, 7\ns_add_u32 s61, s61, {WS_STATS}\nv_lshl_add_u32 v10, v1, 3, s61")
    for q in range(4): a(f"v_subrev_u32 v{4+q}, {2*STAGE}, v{4+q}")
    gpoll(11, S_WS, 16)
    stamp(8)
    lds_set(14, FL_XDMA)
    a(f"s_mov_b32 s73, s{R0}")
    def hreg(i): return HF + 8 * i if i < 12 else PH + 8 * (i - 12)
    vq = []
    def hload(i):
        if i == 21:
            a(f"s_lshl_b32 s61, s73, 10\ns_cmp_lg_u32 s{KH}, 0\ns_cselect_b32 s61, 0x40000000, s61")
        else:
            a("s_lshl_b32 s61, s73, 10")
        a(f"buffer_load_dwordx4 {vr(hreg(i),4)}, v8, s[{S_WS}:{S_WS+3}], s61 offen sc1")
        a(f"buffer_load_dwordx4 {vr(hreg(i)+4,4)}, v9, s[{S_WS}:{S_WS+3}], s61 offen sc1")
        vq.extend([(i, 0), (i, 1)])
        if i < 21: step_adv(73, 1)
    def vneed(tag):
        if tag in vq:
            k = vq.index(tag)
            n = len(vq) - 1 - k
            a(f"s_waitcnt vmcnt({n})")
            del vq[:k + 1]
    a(f"buffer_load_dwordx2 v[10:11], v10, s[{S_WS}:{S_WS+3}], 0 offen sc1")
    for i in range(12): hload(i)
    lds_wait(15, FL_XDMA, 3)
    t = LgkmTracker(a)
    def slot(i):
        if 5 <= i < 15: return ("R01", ((i - 5) // 5) * STAGE + ((i - 5) % 5) * 4096)
        if i == 15: return ("E", 0)
        if i < 21: return ("R2", (i - 16) * 4096)
        return ("E2", 0)
    region = ["R01"]
    a(f"s_lshl_b32 s60, s{KH}, 14\ns_sub_u32 s67, {L_E}, s60")
    a(f"s_sub_u32 s68, s67, {2*STAGE}")
    a(f"s_sub_u32 s69, {L_E + 8192 - 2*STAGE}, s69")
    def step_reads(i):
        reg, off = slot(i)
        out = []
        if reg != region[0]:
            op = {"E": "v_add_u32 v{r}, s67, v{r}", "R2": "v_subrev_u32 v{r}, s68, v{r}", "E2": "v_add_u32 v{r}, s69, v{r}"}[reg]
            region[0] = reg
            pre = [op.format(r=4 + q) for q in range(4)]
        else:
            pre = [None] * 4
        for dt in range(4):
            for h in range(2):
                def f(dt=dt, h=h):
                    if h == 0 and pre[dt]: a(pre[dt])
                    wdread(DB + 16 * (i & 1), dt, h, off, ("d", i & 1, dt, h))
                out.append(f)
        return out
    a("s_setprio 1")
    for i in range(22):
        nxt = step_reads(i + 1) if 5 <= i + 1 < 22 else []
        for ts in range(2):
            for dt in range(4):
                if dt == 0: vneed((i, ts))
                if i >= 5: t.need({("d", i & 1, dt, 0), ("d", i & 1, dt, 1)})
                A = (PH + 16 * i if i < 5 else DB + 16 * (i & 1)) + 4 * dt
                c = A2 + 16 * ts + 4 * dt
                a(f"v_mfma_f32_16x16x32_bf16 {vr(c,4)}, {vr(A,4)}, {vr(hreg(i)+4*ts,4)}, {'0' if i == 0 else vr(c,4)}")
                if nxt: nxt.pop(0)()
        if i < 5:
            hload(12 + 2 * i); hload(13 + 2 * i)
    a("s_setprio 0")
    stamp(9)
    a(f"s_lshl_b32 s60, s3, 12\ns_add_u32 s60, s60, {L_RED}\nv_lshl_add_u32 v4, v0, 4, s60\nv_xor_b32 v5, 8192, v4")
    a("v_lshrrev_b32 v3, 2, v1\nv_lshl_add_u32 v3, v2, 2, v3\nv_bfe_u32 v6, v3, 1, 2\ns_and_b32 s61, s75, 3\nv_xor_b32 v6, s61, v6\nv_lshlrev_b32 v6, 4, v6\nv_lshl_add_u32 v6, v3, 7, v6")
    a(f"v_bfe_u32 v3, v1, 1, 1\nv_lshl_add_u32 v6, v3, 6, v6\nv_and_b32 v3, 1, v1\nv_lshl_add_u32 v6, v3, 3, v6\nv_add_u32 v6, {L_YL}, v6")
    a("v_lshrrev_b32 v3, 1, v2\nv_lshrrev_b32 v7, 1, v1\nv_xor_b32 v7, v7, v3\nv_lshlrev_b32 v7, 4, v7\nv_lshl_add_u32 v7, v1, 7, v7\nv_and_b32 v3, 1, v2\nv_lshl_add_u32 v7, v3, 3, v7")
    a(f"s_lshl_b32 s61, s61, 11\ns_add_u32 s61, s61, {L_XL}\nv_add_u32 v7, s61, v7\nv_xor_b32 v8, 32, v7\nv_xor_b32 v9, 64, v7\nv_xor_b32 v12, 96, v7")
    a("s_barrier")
    a(f"s_cmp_eq_u32 s{KH}, 0\ns_cbranch_scc1 L_xsend0")
    for i in range(4): a(f"ds_write_b128 v4, {vr(A2+4*i,4)} offset:{1024*i}")
    a("s_waitcnt lgkmcnt(0)")
    for i in range(16): a(f"v_mov_b32 v{A2+i}, v{A2+16+i}")
    a("s_branch L_xsent")
    a("L_xsend0:")
    for i in range(4): a(f"ds_write_b128 v4, {vr(A2+16+4*i,4)} offset:{1024*i}")
    a("s_waitcnt lgkmcnt(0)")
    a("L_xsent:")
    a("s_barrier")
    stamp(10)
    xaddr = [7, 8, 9, 12]
    for dt in range(4):
        a(f"ds_read_b128 {vr(16+4*dt,4)}, v5 offset:{1024*dt}")
        a(f"ds_read_b64 {vr(32+2*dt,2)}, v{xaddr[dt]}")
        a(f"ds_read_b64_tr_b16 {vr(40+2*dt,2)}, v6 offset:{2048*dt}")
    a(f"s_lshl_b32 s60, s75, 14\ns_lshl_b32 s61, s{S_DB2}, 7\ns_add_u32 s60, s60, s61")
    a("v_and_b32 v3, 1, v2\nv_lshlrev_b32 v3, 5, v3\nv_lshl_add_u32 v3, v1, 10, v3\nv_lshrrev_b32 v4, 1, v2\nv_lshl_add_u32 v3, v4, 4, v3")
    a("v_mul_f32 v15, v11, v11\nv_mul_f32 v14, v15, v11\nv_mul_f32 v15, 0xbfb8aa3b, v15")
    for dt in range(4):
        a(f"s_waitcnt lgkmcnt({9 - 3*dt})")
        o = A2 + 4 * dt; X = 48; Yv = 52; E = 56
        a(f"v_pk_add_f32 {vr(o,2)}, {vr(o,2)}, {vr(16+4*dt,2)}\nv_pk_add_f32 {vr(o+2,2)}, {vr(o+2,2)}, {vr(18+4*dt,2)}")
        for hh in range(2):
            a(f"v_lshlrev_b32 v{X+2*hh}, 16, v{32+2*dt+hh}\nv_and_b32 v{X+2*hh+1}, 0xffff0000, v{32+2*dt+hh}")
            a(f"v_lshlrev_b32 v{Yv+2*hh}, 16, v{40+2*dt+hh}\nv_and_b32 v{Yv+2*hh+1}, 0xffff0000, v{40+2*dt+hh}")
        for hh in range(2):
            a(f"v_pk_mul_f32 {vr(E+2*hh,2)}, {vr(o+2*hh,2)}, v[14:15] op_sel:[0,1] op_sel_hi:[1,1]")
        for r in range(4): a(f"v_exp_f32 v{E+r}, v{E+r}")
        for hh in range(2):
            a(f"v_pk_mul_f32 {vr(Yv+2*hh,2)}, {vr(Yv+2*hh,2)}, v[14:15] op_sel_hi:[1,0]")
            a(f"v_pk_add_f32 {vr(60+2*hh,2)}, {vr(X+2*hh,2)}, v[10:11] op_sel_hi:[1,0] neg_lo:[0,1] neg_hi:[0,1]")
        for hh in range(2):
            a(f"v_pk_add_f32 {vr(E+2*hh,2)}, {vr(E+2*hh,2)}, 1.0 op_sel_hi:[1,0]")
        for r in range(4): a(f"v_rcp_f32 v{E+r}, v{E+r}")
        for hh in range(2):
            a(f"v_pk_mul_f32 {vr(Yv+2*hh,2)}, {vr(Yv+2*hh,2)}, {vr(60+2*hh,2)}")
            a(f"v_pk_mul_f32 {vr(o+2*hh,2)}, {vr(o+2*hh,2)}, {vr(E+2*hh,2)}")
        for hh in range(2):
            a(f"v_pk_fma_f32 {vr(o+2*hh,2)}, {vr(o+2*hh,2)}, {vr(Yv+2*hh,2)}, {vr(X+2*hh,2)}")
        d = 64 + 2 * dt
        a(f"v_cvt_pk_bf16_f32 v{d}, v{o}, v{o+1}\nv_cvt_pk_bf16_f32 v{d+1}, v{o+2}, v{o+3}")
        if dt & 1:
            d = 64 + 2 * (dt - 1)
            a(f"s_nop 1\nv_permlane16_swap_b32 v{d}, v{d+2}\nv_permlane16_swap_b32 v{d+1}, v{d+3}")
            a(f"buffer_store_dwordx4 {vr(d,4)}, v3, s[{S_OUT}:{S_OUT+3}], s60 offen offset:{32*(dt-1)}")
    if prof:
        a("s_waitcnt vmcnt(0)")
        stamp(11)
        dump_stamps(0)
    a("L_end:")
    return a.text()


def full_text(opt=None):
    ref = open(f"cdna_kernels/{NAME}.s.ref").read().split("\n")
    head = [l for l in ref if l.startswith(";") and "@launch" not in l and not l.startswith("; Override") and not l.startswith("; grid=")]
    out = "\n".join(head) + "\n"
    out += f"; @launch grid=(256,1,1) block=(512,1,1) lds={LDS_BYTES}\n"
    out += f""".amdgcn_target "amdgcn-amd-amdhsa--gfx950"
.text
.globl {NAME}_kernel
.p2align 8
.type {NAME}_kernel,@function
{NAME}_kernel:
"""
    out += gen(opt)
    out += f"""    s_endpgm
.section .rodata,"a"
.p2align 6
.amdhsa_kernel {NAME}_kernel
  .amdhsa_next_free_vgpr 256
  .amdhsa_next_free_sgpr 102
  .amdhsa_accum_offset 256
  .amdhsa_group_segment_fixed_size 0
  .amdhsa_kernarg_size 104
  .amdhsa_user_sgpr_count 2
  .amdhsa_user_sgpr_kernarg_segment_ptr 1
  .amdhsa_system_sgpr_workgroup_id_x 1
.end_amdhsa_kernel
"""
    return out


if __name__ == "__main__":
    import hazard, json
    opt = json.loads(sys.argv[2]) if len(sys.argv) > 2 else {}
    txt = full_text(opt)
    bad = hazard.check(txt)
    for b in bad: print("HAZARD", b)
    path = sys.argv[1] if len(sys.argv) > 1 else f"cdna_kernels/{NAME}.s"
    open(path, "w").write(txt)
    print("wrote", path, len(txt), "bytes")
```

```python
import sys
sys.path.insert(0, "work")
from asmlib import *

NAME = "recurrent_scan__ssm_conv_h3__glu_gated_bilinear__prompt"

F_KV, F_ST, F_CS, F_H, F_Y = 0, 1024, 3072, 7168, 11264
WS_STATS = 0x4000
WS_CSP = 0x8000
WS_PROF = 0x40000
WS_KVT = 0x100000
WS_YT = 0x300000
WS_H = 0x500000
WS_SIZE = 0xB00000
STAGE = 40960
GOFF, UOFF = 16384, 28672
L_KC = 122880
L_U = 139520
L_CS = 148736
L_MU = 149504
L_FLG = 150016
L_E = 150528
L_YL = L_KC
L_XL = L_KC + 8192
L_RED = 0
LDS_BYTES = 163840
FL_XDONE, FL_XPRE, FL_XDMA, FL_YRDY, FL_YB0, FL_YKA, FL_YKB, FL_YFIN = 0, 16, 32, 48, 64, 80, 96, 112
S_Q, S_K, S_V, S_SK, S_SM, S_WG, S_WU, S_WD, S_OUT, S_DBG, S_WS, S_SD = 4, 8, 12, 16, 20, 24, 28, 32, 36, 40, 44, 48
S_XCD, S_J, S_MI, S_FI, S_ROT, S_TT2, S_DB2, S_R2 = 50, 51, 52, 53, 54, 55, 56, 57
SPIN_MAX = 200000


def srdw(a, r, size):
    a(f"s_mov_b32 s{r+2}, {size}\ns_mov_b32 s{r+3}, 0x20000")


def gen(opt=None):
    opt = opt or {}
    prof = opt.get("prof", 0)
    a = Asm()
    nstamp = [0]

    names = {0: [], 1: []}
    role_now = [1]
    def stamp(name):
        if prof:
            k = len(names[role_now[0]]) + 1
            assert k < 24
            names[role_now[0]].append(name)
            a(f"s_memrealtime s[76:77]\ns_waitcnt lgkmcnt(0)\ns_mov_b32 s{78+k}, s76")
    global STAMP_NAMES
    STAMP_NAMES = names

    def dump_stamps(role):
        if not prof: return
        amp = opt.get("amp")
        if amp:
            if amp[0] == role:
                k = names[role].index(amp[1]) + 1
                lab = a.label("amp"); out = a.label("ampo")
                a(f"s_and_b32 s60, s3, 3\ns_cmp_lg_u32 s60, 0\ns_cbranch_scc1 {out}\ns_cmp_lg_u32 s2, {amp[3]}\ns_cbranch_scc1 {out}")
                a(f"s_sub_u32 s60, s{78+k}, s78\ns_min_u32 s60, s60, 10000\ns_mul_i32 s60, s60, {amp[2]}")
                a(f"{lab}:\ns_memrealtime s[76:77]\ns_waitcnt lgkmcnt(0)\ns_sub_u32 s61, s76, s78\ns_cmp_lt_u32 s61, s60\ns_cbranch_scc1 {lab}\n{out}:")
            return
        lab = a.label("nodump")
        a(f"s_and_b32 s60, s3, 3\ns_cmp_lg_u32 s60, {opt.get('profwave', 0)}\ns_cbranch_scc1 {lab}")
        a(f"s_lshl_b32 s60, s2, 8\ns_add_u32 s60, s60, {WS_PROF + 128*role}\nv_mov_b32 v3, 0\ns_mov_b64 exec, 1")
        for g in range(6):
            for i in range(4):
                a(f"v_mov_b32 v{16+4*g+i}, s{78+4*g+i}")
            a(f"buffer_store_dwordx4 v[{16+4*g}:{19+4*g}], v3, s[{S_WS}:{S_WS+3}], s60 offen offset:{16*g}")
        a(f"{lab}:")

    def lds_set(addr_v, off):
        a(f"ds_write_b32 v{addr_v}, v13 offset:{off}")

    def lds_wait(addr_v, off, tmp):
        lab = a.label("lw"); out = a.label("lwo")
        a(f"s_mov_b32 s60, 0\n{lab}:")
        a(f"ds_read_b32 v{tmp}, v{addr_v} offset:{off}\ns_add_u32 s60, s60, 1\ns_cmp_gt_u32 s60, {SPIN_MAX*8}\ns_cbranch_scc1 {out}")
        a(f"s_waitcnt lgkmcnt(0)\nv_cmp_eq_u32 vcc, 0, v{tmp}\ns_cbranch_vccnz {lab}")
        a(f"{out}:\ns_waitcnt lgkmcnt(0)")

    def gpoll(addr_v, srd, tmp, first_done=False):
        lab = a.label("gp"); out = a.label("gpo"); chk = a.label("gpc")
        a("s_mov_b32 s60, 0")
        if first_done: a(f"s_branch {chk}")
        a(f"{lab}:")
        a(f"buffer_load_dword v{tmp}, v{addr_v}, s[{srd}:{srd+3}], 0 offen sc1")
        a(f"s_add_u32 s60, s60, 1\ns_cmp_gt_u32 s60, {SPIN_MAX}\ns_cbranch_scc1 {out}")
        a("s_waitcnt vmcnt(0)")
        a(f"{chk}:")
        a(f"v_cmp_ne_u32 vcc, 1, v{tmp}\ns_cbranch_vccnz {lab}")
        a(f"{out}:")

    a("s_cmp_ge_u32 s2, 256\ns_cbranch_scc1 L_end")
    a(f"s_load_dwordx2 s[{S_Q}:{S_Q+1}], s[0:1], 0")
    a(f"s_load_dwordx2 s[{S_WG}:{S_WG+1}], s[0:1], 56")
    a(f"s_load_dwordx2 s[{S_WU}:{S_WU+1}], s[0:1], 64")
    a(f"s_load_dwordx2 s[{S_WS}:{S_WS+1}], s[0:1], 96")
    if prof: a("s_memrealtime s[78:79]")
    a("v_lshrrev_b32 v1, 6, v0\nv_and_b32 v0, 63, v0")
    a(f"s_and_b32 s{S_XCD}, s2, 7\ns_lshr_b32 s{S_J}, s2, 3")
    a("v_readfirstlane_b32 s3, v1")
    a(f"s_and_b32 s58, s2, 1\ns_and_b32 s{S_DB2}, s{S_J}, 7\ns_lshl3_add_u32 s{S_MI}, s58, s{S_DB2}")
    a(f"s_lshr_b32 s59, s{S_XCD}, 1\ns_lshr_b32 s60, s2, 6\ns_lshl2_add_u32 s{S_FI}, s59, s60")
    a(f"s_lshl1_add_u32 s61, s60, s{S_DB2}\ns_and_b32 s{S_ROT}, s61, 7")
    a(f"s_lshl2_add_u32 s{S_TT2}, s{S_XCD}, s60")
    a(f"s_mul_i32 s{S_R2}, s61, 11\ns_lshr_b32 s{S_R2}, s{S_R2}, 2")
    srdw(a, S_Q, 2097152)
    srdw(a, S_WS, WS_SIZE)
    a("s_cmp_lt_u32 s3, 4\ns_cbranch_scc1 L_X")

    YW = 62
    a(f"s_sub_u32 s{YW}, s3, 4")
    srdw(a, S_WG, 1409024)
    srdw(a, S_WU, 1409024)
    a(f"s_mul_i32 s63, s{YW}, 44032\ns_mul_i32 s64, s{S_FI}, 192\ns_add_u32 s63, s63, s64\ns_movk_i32 s65, 2752")
    a("s_sub_u32 s64, s65, s64\ns_lshr_b32 s64, s64, 4\ns_cmp_eq_u32 s53, 15\ns_cselect_b32 s64, 0, s64")
    a("v_mov_b32 v11, 0x80000000")
    for i in range(3):
        a(f"v_add_u32 v1, {64*i}, v0\nv_mul_u32_u24 v2, 43691, v1\nv_lshrrev_b32 v2, 19, v2")
        a("v_mul_u32_u24 v3, 12, v2\nv_sub_u32 v1, v1, v3")
        a("v_lshrrev_b32 v3, 2, v2\nv_and_b32 v3, 2, v3\nv_xor_b32 v1, v1, v3")
        a("v_cmp_gt_u32 vcc, s64, v1\nv_mul_u32_u24 v2, s65, v2\nv_lshl_add_u32 v2, v1, 4, v2\nv_add_u32 v2, s63, v2")
        a(f"v_cndmask_b32 v{8+i}, v11, v2, vcc")
    a("v_lshrrev_b32 v1, 3, v0\nv_and_b32 v2, 7, v0\nv_lshrrev_b32 v3, 4, v0\nv_xor_b32 v2, v2, v3\nv_lshlrev_b32 v2, 4, v2\nv_lshl_add_u32 v4, v1, 10, v2")
    a(f"s_lshl2_add_u32 s63, s{S_MI}, s{YW}\ns_lshl_b32 s63, s63, 15\ns_cmp_eq_u32 s{S_FI}, 15\ns_cselect_b32 s63, 0x80000000, s63")
    a("v_add_u32 v4, s63, v4\nv_xor_b32 v5, 64, v4\nv_add_u32 v5, 8192, v5\nv_add_u32 v6, 16384, v4\nv_add_u32 v7, 16384, v5")
    a(f"s_lshl_b32 s63, s{YW}, 12\ns_mul_i32 s64, s{YW}, 3072\ns_add_u32 s64, s64, {GOFF}")
    a(f"s_mov_b32 s65, s{S_ROT}")

    def chunk(c):
        base = (c % 3) * STAGE
        a(f"s_lshl_b32 s66, s65, 7\ns_mul_i32 s67, s65, 176128\ns_add_u32 m0, s64, {base}\ns_add_u32 s65, s65, 1")
        for i in range(3):
            a(f"buffer_load_dwordx4 v{8+i}, s[{S_WG}:{S_WG+3}], s67 offen lds")
            a(f"s_add_u32 m0, m0, {UOFF-GOFF}\ns_nop 0")
            a(f"buffer_load_dwordx4 v{8+i}, s[{S_WU}:{S_WU+3}], s67 offen lds")
            if i < 2: a(f"s_sub_u32 m0, m0, {UOFF-GOFF-1024}\ns_nop 0")
        a(f"s_add_u32 m0, s63, {base}\ns_and_b32 s65, s65, 7")
        for i in range(4):
            a(f"buffer_load_dwordx4 v{4+i}, s[{S_Q}:{S_Q+3}], s66 offen lds")
            if i < 3: a("s_add_u32 m0, m0, 1024\ns_nop 0")

    a("s_waitcnt lgkmcnt(0)")
    stamp("karg")
    chunk(0)
    stamp("c0issued")
    a(f"s_load_dwordx2 s[{S_SM}:{S_SM+1}], s[0:1], 32\ns_load_dwordx2 s[{S_SD}:{S_SD+1}], s[0:1], 40")
    a(f"s_load_dwordx2 s[{S_WD}:{S_WD+1}], s[0:1], 72\ns_load_dwordx2 s[{S_DBG}:{S_DBG+1}], s[0:1], 88")
    chunk(1)
    stamp("c1issued")
    srdw(a, S_SM, 2097152); srdw(a, S_WD, 1409024); srdw(a, S_DBG, 256)
    a("v_and_b32 v1, 15, v0\nv_lshrrev_b32 v2, 4, v0\nv_mov_b32 v13, 1")
    CH, DH, DCH = 68, 69, 70
    a(f"s_lshr_b32 s{CH}, s{YW}, 1\ns_and_b32 s{DH}, s{YW}, 1")
    a(f"s_and_b32 s60, s{S_J}, 15\ns_lshl1_add_u32 s60, s60, s{CH}\ns_lshr_b32 s61, s{S_J}, 4\ns_lshl1_add_u32 s60, s60, s61")
    a(f"s_lshl_b32 s61, s{S_XCD}, 6\ns_add_u32 s{DCH}, s60, s61")
    a("v_lshrrev_b32 v3, 2, v1\nv_lshl_add_u32 v3, v2, 3, v3\nv_mul_u32_u24 v3, 192, v3\nv_and_b32 v14, 3, v1\nv_lshl_add_u32 v3, v14, 3, v3")
    a(f"s_mul_i32 s60, s{CH}, {UOFF-GOFF}\ns_add_u32 s60, s60, {GOFF}\nv_add_u32 v3, s60, v3")
    a(f"v_and_b32 v14, 1, v2\ns_mul_i32 s60, s{DH}, 3\ns_add_u32 s61, s60, 1")
    a("v_xor_b32 v15, s61, v14\nv_xor_b32 v14, s60, v14\nv_lshl_add_u32 v14, v14, 5, v3\nv_lshl_add_u32 v15, v15, 5, v3")
    for i in range(4): a(f"v_mov_b32 v{16+i}, 0x3f803f80")
    a("s_waitcnt lgkmcnt(0)")
    a(f"s_lshl_b32 s60, s{DCH}, 12\ns_load_dword s71, s[{S_SM}:{S_SM+1}], s60")
    a(f"s_andn2_b32 s61, s{DCH}, 1\ns_lshl_b32 s61, s61, 1\ns_load_dword s72, s[{S_SD}:{S_SD+1}], s61")
    a(f"s_and_b32 s60, s2, 1\ns_lshl1_add_u32 s73, s{S_FI}, s60")
    a(f"s_lshl3_add_u32 s60, s73, s{S_DB2}\ns_mul_i32 s60, s60, 768\ns_mul_i32 s61, s{YW}, 192\ns_add_u32 s60, s60, s61\ns_add_u32 s74, s60, {WS_CSP}")
    a("v_lshlrev_b32 v12, 4, v2")
    stamp("sloads")
    a("s_waitcnt vmcnt(10) lgkmcnt(0)")
    stamp("c0land")
    a("s_barrier")
    for jj in range(3):
        for ks in range(2):
            for h in range(2):
                r = 32 + 8 * jj + 4 * ks + 2 * h
                a(f"ds_read_b64_tr_b16 {vr(r,2)}, v{15 if jj == 1 else 14} offset:{ks*6144 + h*768 + (64 if jj == 2 else 0)}")
    a("s_waitcnt lgkmcnt(0)")
    for ks in range(2):
        for jj in range(3):
            c = 20 + 4 * jj
            a(f"v_mfma_f32_16x16x32_bf16 {vr(c,4)}, {vr(32+8*jj+4*ks,4)}, v[16:19], {'0' if ks == 0 else vr(c,4)}")
    a("s_mov_b32 exec_lo, 0x00010001\ns_mov_b32 exec_hi, 0x00010001\ns_nop 5")
    for jj in range(3):
        a(f"buffer_store_dwordx4 {vr(20+4*jj,4)}, v12, s[{S_WS}:{S_WS+3}], s74 offen offset:{64*jj} sc1")
    a("s_mov_b64 exec, -1")
    chunk(2)
    a("v_and_b32 v12, 3, v0\nv_lshlrev_b32 v12, 2, v12")
    a(f"s_lshl_b32 s60, s{S_XCD}, 7\ns_lshl_b32 s61, s{S_MI}, 7\ns_add_u32 s61, s61, {F_ST}\ns_lshl_b32 s66, s73, 7\ns_add_u32 s66, s66, {F_CS}")
    a("v_lshlrev_b32 v3, 2, v0\nv_add_u32 v15, s60, v3")
    a("v_add_u32 v16, s61, v3\nv_subrev_u32 v16, 128, v16\nv_cmp_le_u32 vcc, 32, v0\nv_and_b32 v3, 28, v3\nv_add_u32 v17, s66, v3\nv_cndmask_b32 v15, v15, v16, vcc")
    a("v_cmp_le_u32 vcc, 48, v0")
    a(f"s_lshl2_add_u32 s60, s{S_J}, s60\ns_lshl2_add_u32 s61, s{S_FI}, s61\ns_lshl2_add_u32 s66, s{S_DB2}, s66")
    a("v_cndmask_b32 v15, v15, v17, vcc")
    a("v_mov_b32 v14, s60\nv_writelane_b32 v14, s61, 1\nv_writelane_b32 v14, s66, 2")
    stamp("c2issued")
    a("s_waitcnt vmcnt(13)\ns_barrier")
    stamp("P0")
    a(f"buffer_load_dword v16, v12, s[{S_DBG}:{S_DBG+3}], 0 offen sc1")
    chunk(3)
    a("s_waitcnt vmcnt(10)\ns_barrier")
    a(f"s_cmp_lg_u32 s{YW}, 0\ns_cbranch_scc1 L_ynosig")
    gpoll(12, S_DBG, 16, first_done=True)
    a("s_mov_b64 exec, 7")
    a(f"buffer_store_dword v13, v14, s[{S_WS}:{S_WS+3}], 0 offen sc1")
    a("s_mov_b64 exec, -1")
    a("L_ynosig:")
    stamp("p0sig")
    chunk(4)
    a(f"v_mov_b32 v16, 0\nv_lshlrev_b32 v3, 2, v0\ns_lshl_b32 s60, s{YW}, 8\ns_add_u32 s60, s60, {L_U + 8192}\nv_add_u32 v17, s60, v3")
    a("ds_write_b32 v17, v16")
    a(f"s_mul_i32 s75, s{YW}, 4160\ns_add_u32 s75, s75, {L_KC}\nv_add_u32 v17, s75, v3\ns_lshl_b32 s71, s71, 16\nv_writelane_b32 v16, s71, 7")
    a(f"s_lshr_b32 s60, 255, s{DH}\ns_mov_b32 exec_lo, s60\ns_mov_b32 exec_hi, 0")
    a("ds_write_b32 v17, v16\ns_mov_b64 exec, -1")
    a("s_waitcnt vmcnt(10)\ns_barrier")
    chunk(5)
    a("v_lshlrev_b32 v18, 2, v0\nv_cmp_gt_u32 vcc, 48, v0")
    a(f"s_mul_i32 s74, s73, 6144\ns_mul_i32 s61, s{YW}, 192\ns_add_u32 s74, s74, s61\ns_add_u32 s74, s74, {WS_CSP}")
    a("v_cndmask_b32 v18, v11, v18, vcc")
    a(f"s_lshl2_add_u32 s60, s{S_MI}, s{YW}\ns_lshl_b32 s60, s60, 8\ns_add_u32 s60, s60, {WS_STATS}\nv_and_b32 v19, 31, v0\nv_lshl_add_u32 v19, v19, 3, s60")
    a(f"s_lshl_b32 s60, s{S_XCD}, 18\ns_lshl_b32 s61, s{YW}, 16\ns_sub_u32 s60, s60, s61\ns_lshl_b32 s61, s{S_J}, 5\ns_add_u32 s60, s60, s61\ns_add_u32 s60, s60, {WS_KVT + 255*1024}")
    a("v_xor_b32 v3, v0, v2\nv_and_b32 v3, 1, v3\nv_lshl_add_u32 v20, v3, 4, s60\nv_lshrrev_b32 v3, 1, v0\nv_lshlrev_b32 v3, 10, v3\nv_sub_u32 v20, v20, v3\nv_subrev_u32 v21, 32768, v20")
    a(f"s_lshl_b32 s60, s{DCH}, 12\ns_xor_b32 s61, s{DH}, 1\ns_lshl1_add_u32 s60, s61, s60\nv_lshl_add_u32 v22, v0, 4, s60")
    a(f"s_lshl2_add_u32 s75, s61, s75\ns_add_u32 s75, s75, 28")
    a(f"v_and_b32 v3, 1, v2\ns_lshl_b32 s60, s{DH}, 1\nv_or_b32 v3, s60, v3\nv_lshlrev_b32 v3, 1, v3\nv_and_b32 v23, 7, v0\nv_xor_b32 v23, v23, v3\nv_lshlrev_b32 v23, 4, v23")
    a(f"v_lshrrev_b32 v3, 3, v0\nv_lshl_add_u32 v23, v3, 10, v23\ns_lshl_b32 s60, s{YW}, 13\ns_lshl_b32 s61, s{S_DB2}, 7\ns_add_u32 s60, s60, s61\nv_add_u32 v23, s60, v23")
    a("s_waitcnt vmcnt(10)\ns_barrier")
    chunk(6)
    a(f"s_mul_i32 s60, s{CH}, 8320\ns_lshl_b32 s61, s{DH}, 8\ns_add_u32 s60, s60, s61\ns_add_u32 s60, s60, {L_KC}")
    a("v_and_b32 v3, 1, v1\nv_mul_u32_u24 v24, 4158, v3\nv_lshl_add_u32 v24, v1, 1, v24\nv_lshl_add_u32 v24, v2, 4, v24\nv_add_u32 v24, s60, v24")
    a("v_add_u32 v25, 1024, v24\nv_add_u32 v26, 2048, v24\nv_add_u32 v27, 3072, v24")
    a(f"s_lshl_b32 s60, s{DH}, 4\ns_add_u32 s60, s60, 30\nv_lshlrev_b32 v3, 1, v1\nv_sub_u32 v3, v2, v3\nv_add_u32 v3, s60, v3")
    for dl in range(4):
        a(f"v_add_u32 v16, {4*dl}, v3\nv_bfe_u32 v17, v16, 3, 1\nv_xor_b32 v17, s{CH}, v17\nv_lshlrev_b32 v17, 4, v17\nv_lshl_add_u32 v17, v16, 5, v17\nv_add_u32 v{28+dl}, {L_U}, v17")
    a("s_waitcnt vmcnt(10)\ns_barrier")
    a(f"buffer_load_dword v16, v15, s[{S_WS}:{S_WS+3}], 0 offen sc1")
    chunk(7)
    a("s_waitcnt vmcnt(10)")
    stamp("poll1")
    gpoll(15, S_WS, 16, first_done=True)
    stamp("pollok")
    a("s_add_u32 s61, s74, 3072")
    for r in range(8):
        a(f"buffer_load_dword v{32+r}, v18, s[{S_WS}:{S_WS+3}], s{74 if r < 4 else 61} offen offset:{768*(r%4)} sc1")
    a(f"buffer_load_dword v40, v19, s[{S_WS}:{S_WS+3}], 0 offen sc1")
    a(f"s_lshl_b32 s60, s{YW}, 11\ns_add_u32 m0, s60, {L_U}\ns_nop 0")
    a(f"buffer_load_dwordx4 v20, s[{S_WS}:{S_WS+3}], 0 offen sc1 lds")
    a("s_add_u32 m0, m0, 1024\ns_nop 0")
    a(f"buffer_load_dwordx4 v21, s[{S_WS}:{S_WS+3}], 0 offen sc1 lds")
    a("s_mov_b32 m0, s75\ns_nop 0")
    for i in range(4):
        a(f"buffer_load_dwordx4 v22, s[{S_SM}:{S_SM+3}], 0 offen offset:{1024*i} lds")
    a("s_barrier")
    a(f"s_mul_i32 s60, s{YW}, 192\ns_add_u32 s60, s60, {L_CS}\nv_lshl_add_u32 v16, v0, 2, s60")
    a(f"s_lshl_b32 s60, s{YW}, 7\ns_add_u32 s60, s60, {L_MU}\nv_and_b32 v17, 31, v0\nv_lshl_add_u32 v17, v17, 2, s60")
    a("s_waitcnt vmcnt(6)")
    a("v_add_f32 v32, v32, v33\nv_add_f32 v34, v34, v35\nv_add_f32 v36, v36, v37\nv_add_f32 v38, v38, v39\nv_add_f32 v32, v32, v34\nv_add_f32 v36, v36, v38\nv_add_f32 v32, v32, v36")
    a("ds_write_b32 v17, v40")
    a("s_mov_b32 exec_hi, 0xffff\nds_write_b32 v16, v32\ns_mov_b64 exec, -1")
    a("s_waitcnt lgkmcnt(0)")
    stamp("csdone")
    a("s_barrier")
    a(f"s_lshl_b32 s63, s{YW}, 10\ns_add_u32 s63, s63, {2*STAGE}")
    for kh in range(2):
        n = 22 - kh
        a(f"s_sub_u32 s60, s{S_R2}, {n}\ns_cselect_b32 s60, s{S_R2}, s60")
        for i in range(5):
            a(f"s_add_u32 s61, s60, {22*kh}\ns_lshl_b32 s61, s61, 15\ns_add_u32 m0, s63, {kh*20480 + i*4096}\ns_add_u32 s60, s60, 1")
            a(f"buffer_load_dwordx4 v23, s[{S_WD}:{S_WD+3}], s61 offen lds")
            if i < 4: a(f"s_cmp_eq_u32 s60, {n}\ns_cselect_b32 s60, 0, s60")
    stamp("b0issued")
    a(f"s_lshl2_add_u32 s60, s{YW}, {L_FLG}\nv_mov_b32 v14, s60\ns_xor_b32 s60, s60, 4\nv_mov_b32 v12, s60\nv_and_b32 v15, 3, v0\nv_lshlrev_b32 v15, 2, v15\nv_add_u32 v15, {L_FLG}, v15")
    a("s_waitcnt vmcnt(10)")
    lds_set(14, FL_YRDY)
    lds_wait(15, FL_YRDY, 16)
    stamp("convstart")
    CACC = 224
    def AF(st, g): return 32 + 64 * st + 4 * g
    def BF(st, m): return 64 + 64 * st + 4 * m
    t = LgkmTracker(a)
    def conv_reads(dl):
        st = dl & 1
        out = []
        for g in range(8):
            o = 128 * (g & 1) + 16 * dl
            out.append(lambda g=g, o=o: t.issue(f"ds_read2_b32 {vr(AF(st,g),2)}, v{24+(g>>1)} offset0:{o} offset1:{o+1}", ("a", st, g, 0)))
            out.append(lambda g=g, o=o: t.issue(f"ds_read2_b32 {vr(AF(st,g)+2,2)}, v{24+(g>>1)} offset0:{o+2} offset1:{o+3}", ("a", st, g, 1)))
            out.append(lambda g=g: t.issue(f"ds_read_b128 {vr(BF(st,g),4)}, v{28+dl} offset:{(7-g)*1024}", ("b", st, g)))
        return out
    pend = conv_reads(0)
    for f in pend[:12]: f()
    pend = pend[12:]
    for dl in range(4):
        st = dl & 1
        if dl < 3: pend = pend + conv_reads(dl + 1)
        m = 0
        for N in range(8):
            for g in range(N + 1):
                M = N - g
                t.need({("a", st, g, 0), ("a", st, g, 1), ("b", st, M)})
                c = CACC + 4 * N
                a(f"v_mfma_f32_16x16x32_bf16 {vr(c,4)}, {vr(AF(st,g),4)}, {vr(BF(st,M),4)}, {'0' if (dl == 0 and g == 0) else vr(c,4)}")
                if pend: pend.pop(0)()
                m += 1
                if dl == 3 and m == 4:
                    t.drain()
                    lds_set(14, FL_YKA)
                    t.q.append(("flag",))
        assert not pend
        if dl == opt.get("b0wait", 2):
            a("s_waitcnt vmcnt(0)")
            lds_set(14, FL_YB0)
            t.q.append(("flag",))
    t.drain()
    stamp("convend")
    lds_wait(12, FL_YKA, 16)
    a(f"s_mul_i32 s60, s{CH}, 8320\ns_add_u32 s60, s60, {L_KC}\ns_lshl_b32 s61, s{DH}, 12\ns_add_u32 s63, s60, s61\ns_xor_b32 s61, s61, 4096\ns_add_u32 s61, s60, s61")
    a("v_lshl_add_u32 v16, v0, 4, s63\nv_lshl_add_u32 v17, v0, 4, s61")
    a(f"s_lshl_b32 s60, s{DH}, 7\ns_sub_u32 s60, {255-96}, s60\nv_lshrrev_b32 v3, 1, v2\nv_lshl_add_u32 v3, v1, 1, v3\nv_sub_u32 v3, s60, v3")
    a(f"v_bfe_u32 v18, v3, 3, 1\nv_xor_b32 v18, s{CH}, v18\nv_lshlrev_b32 v18, 4, v18\nv_lshl_add_u32 v18, v3, 5, v18")
    a(f"v_and_b32 v3, 1, v2\nv_xor_b32 v3, 1, v3\nv_lshl_add_u32 v18, v3, 3, v18\nv_add_u32 v18, {L_U}, v18")
    a(f"s_cmp_eq_u32 s{DH}, 0\ns_cbranch_scc1 L_ysend0")
    for i in range(4): a(f"ds_write_b128 v16, {vr(CACC+4*i,4)} offset:{1024*i}")
    a("s_waitcnt lgkmcnt(0)")
    for i in range(16): a(f"v_mov_b32 v{CACC+i}, v{CACC+16+i}")
    a("s_branch L_ysent")
    a("L_ysend0:")
    for i in range(4): a(f"ds_write_b128 v16, {vr(CACC+16+4*i,4)} offset:{1024*i}")
    a("s_waitcnt lgkmcnt(0)")
    a("L_ysent:")
    lds_set(14, FL_YKB)
    for i in range(4): a(f"ds_read_b64 {vr(48+2*i,2)}, v18 offset:{(3-i)*1024}")
    a(f"s_and_b32 s60, s{DCH}, 1\ns_lshl_b32 s60, s60, 4\ns_lshr_b32 s72, s72, s60\ns_lshl_b32 s72, s72, 16")
    lds_wait(12, FL_YKB, 19)
    for i in range(4): a(f"ds_read_b128 {vr(32+4*i,4)}, v17 offset:{1024*i}")
    for i in range(4):
        u0, u1 = 48 + 2 * i, 49 + 2 * i
        c = CACC + 4 * i
        a(f"v_and_b32 v56, 0xffff0000, v{u1}\nv_lshlrev_b32 v57, 16, v{u1}\nv_and_b32 v58, 0xffff0000, v{u0}\nv_lshlrev_b32 v59, 16, v{u0}")
        for r in range(4): a(f"v_fma_f32 v{c+r}, v{56+r}, s72, v{c+r}")
    a(f"s_lshl_b32 s60, s{DCH}, 12\ns_lshl_b32 s61, s{DH}, 11\ns_add_u32 s60, s60, s61\ns_add_u32 s60, s60, {WS_YT}\nv_lshlrev_b32 v3, 4, v0")
    a("s_waitcnt lgkmcnt(0)")
    lds_set(14, FL_YFIN)
    for pr in range(2):
        d = 60 + 4 * pr
        for b in range(2):
            i = 2 * pr + b; c = CACC + 4 * i; p = 32 + 4 * i
            a(f"v_pk_add_f32 {vr(c,2)}, {vr(c,2)}, {vr(p,2)}\nv_pk_add_f32 {vr(c+2,2)}, {vr(c+2,2)}, {vr(p+2,2)}")
            a(f"v_cvt_pk_bf16_f32 v{d+2*b}, v{c}, v{c+1}\nv_cvt_pk_bf16_f32 v{d+2*b+1}, v{c+2}, v{c+3}")
        a(f"s_nop 1\nv_permlane16_swap_b32 v{d}, v{d+2}\nv_permlane16_swap_b32 v{d+1}, v{d+3}")
        a(f"buffer_store_dwordx4 {vr(d,4)}, v3, s[{S_WS}:{S_WS+3}], s60 offen offset:{1024*pr} sc1")
    stamp("ystored")
    a(f"s_lshl1_add_u32 s60, s{S_XCD}, s{DH}\ns_lshl_b32 s60, s60, 8\ns_lshl1_add_u32 s61, s{S_J}, s{CH}\ns_lshl2_add_u32 s60, s61, s60\ns_add_u32 s60, s60, {F_Y}\nv_mov_b32 v16, s60")
    a(f"s_lshr_b32 s60, s{S_TT2}, 4\ns_lshl1_add_u32 s60, s{S_DB2}, s60\ns_lshl_b32 s60, s60, 8\ns_add_u32 s60, s60, {F_Y}\nv_lshl_add_u32 v17, v0, 2, s60")
    a("v_and_b32 v3, 7, v0\nv_xor_b32 v3, v3, v2\nv_lshlrev_b32 v3, 4, v3\nv_lshrrev_b32 v19, 3, v0\nv_lshl_add_u32 v20, v19, 10, v3")
    a(f"s_lshl2_add_u32 s60, s{S_TT2}, s{YW}\ns_lshl_b32 s60, s60, 14\ns_lshl_b32 s61, s{S_DB2}, 7\ns_add_u32 s60, s60, s61\nv_add_u32 v20, s60, v20\nv_xor_b32 v21, 64, v20\nv_add_u32 v21, 8192, v21")
    a("v_and_b32 v3, 3, v0\nv_xor_b32 v3, v3, v2\nv_lshlrev_b32 v3, 4, v3\nv_lshl_add_u32 v22, v19, 12, v3\nv_bfe_u32 v3, v0, 2, 1\nv_lshl_add_u32 v22, v3, 9, v22")
    a(f"s_lshl2_add_u32 s60, s{S_DB2}, s{YW}\ns_lshl_b32 s60, s60, 16\ns_lshr_b32 s61, s{S_TT2}, 3\ns_lshl_b32 s61, s61, 10\ns_add_u32 s60, s60, s61")
    a(f"s_and_b32 s61, s{S_TT2}, 7\ns_lshl_b32 s61, s61, 6\ns_add_u32 s60, s60, s61\ns_add_u32 s60, s60, {WS_YT}\nv_add_u32 v22, s60, v22\nv_add_u32 v23, 32768, v22")
    a("s_waitcnt vmcnt(0)\ns_mov_b64 exec, 1")
    a(f"buffer_store_dword v13, v16, s[{S_WS}:{S_WS+3}], 0 offen sc1")
    a("s_mov_b64 exec, -1")
    stamp("yflag")
    lds_wait(15, FL_YFIN, 16)
    a(f"s_lshl_b32 s63, s{YW}, 11\ns_add_u32 m0, s63, {L_XL}\ns_nop 0")
    a(f"buffer_load_dwordx4 v20, s[{S_Q}:{S_Q+3}], 0 offen lds")
    a("s_add_u32 m0, m0, 1024\ns_nop 0")
    a(f"buffer_load_dwordx4 v21, s[{S_Q}:{S_Q+3}], 0 offen lds")
    gpoll(17, S_WS, 16)
    stamp("yready")
    a(f"s_add_u32 m0, s63, {L_YL}\ns_nop 0")
    a(f"buffer_load_dwordx4 v22, s[{S_WS}:{S_WS+3}], 0 offen sc1 lds")
    a("s_add_u32 m0, m0, 1024\ns_nop 0")
    a(f"buffer_load_dwordx4 v23, s[{S_WS}:{S_WS+3}], 0 offen sc1 lds")
    a("s_barrier")
    a("s_waitcnt vmcnt(0)")
    stamp("ylanded")
    a("s_barrier")
    dump_stamps(1)
    a("s_endpgm")

    a("L_X:")
    role_now[0] = 0
    a(f"s_load_dwordx2 s[{S_K}:{S_K+1}], s[0:1], 8\ns_load_dwordx2 s[{S_V}:{S_V+1}], s[0:1], 16\ns_load_dwordx2 s[{S_SK}:{S_SK+1}], s[0:1], 24")
    srdw(a, S_K, 2097152); srdw(a, S_V, 2097152); srdw(a, S_SK, 4096)
    a(f"s_lshl2_add_u32 s60, s{S_J}, s3\ns_lshl_b32 s61, s60, 14\ns_lshl_b32 s62, s{S_XCD}, 7\ns_add_u32 s61, s61, s62")
    a("v_and_b32 v1, 31, v0\nv_lshrrev_b32 v2, 5, v0\nv_lshlrev_b32 v3, 13, v2\nv_lshl_add_u32 v3, v1, 2, v3\nv_add_u32 v4, s61, v3\nv_subrev_u32 v5, 3072, v4")
    a(f"s_lshl_b32 s62, s{S_XCD}, 9\nv_lshl_add_u32 v6, v1, 4, s62")
    a(f"s_lshl4_add_u32 s63, s{S_MI}, s{S_FI}\ns_lshl2_add_u32 s63, s63, s3\ns_lshl_b32 s64, s63, 11\nv_lshlrev_b32 v7, 10, v2\nv_lshl_add_u32 v7, v1, 4, v7\nv_add_u32 v7, s64, v7")
    a("s_movk_i32 s65, 4096")
    a("s_waitcnt lgkmcnt(0)")
    stamp("karg")
    for i in range(3): a(f"buffer_load_dword v{16+i}, v5, s[{S_K}:{S_K+3}], 0 offen offset:{1024*i}")
    for i in range(8): a(f"buffer_load_dword v{19+i}, v4, s[{S_K}:{S_K+3}], {'0' if i < 4 else 's65'} offen offset:{1024*(i%4)}")
    a(f"buffer_load_dwordx4 v[36:39], v6, s[{S_SK}:{S_SK+3}], 0 offen")
    for i in range(8): a(f"buffer_load_dword v{28+i}, v4, s[{S_V}:{S_V+3}], {'0' if i < 4 else 's65'} offen offset:{1024*(i%4)}")
    a(f"buffer_load_dwordx4 v[40:43], v7, s[{S_Q}:{S_Q+3}], 0 offen\nbuffer_load_dwordx4 v[44:47], v7, s[{S_Q}:{S_Q+3}], 0 offen offset:512")
    a(f"s_load_dwordx2 s[{S_WD}:{S_WD+1}], s[0:1], 72\ns_load_dwordx2 s[{S_OUT}:{S_OUT+1}], s[0:1], 80\ns_load_dwordx2 s[{S_DBG}:{S_DBG+1}], s[0:1], 88")
    srdw(a, S_WD, 1409024); srdw(a, S_OUT, 2097152); srdw(a, S_DBG, 256)
    ACC, XF, WF = 160, 16, 80
    for r in range(4): a(f"v_mov_b32 v{ACC+r}, 0")
    a("v_mov_b32 v13, 1")
    a(f"v_lshlrev_b32 v8, 2, v1\nv_add_u32 v8, {L_FLG}, v8\nds_write_b32 v8, v{ACC}")
    a("s_cmp_lg_u32 s2, 0\ns_cbranch_scc1 L_noclear")
    a("s_lshl_b32 s61, s3, 12\nv_lshlrev_b32 v8, 4, v0")
    for i in range(4): a(f"buffer_store_dwordx4 {vr(ACC,4)}, v8, s[{S_WS}:{S_WS+3}], s61 offen offset:{1024*i} sc1")
    a("s_lshl_b32 s61, s3, 2\nv_mov_b32 v8, s61\ns_waitcnt vmcnt(0) lgkmcnt(0)\ns_mov_b64 exec, 1")
    a(f"buffer_store_dword v13, v8, s[{S_DBG}:{S_DBG+3}], 0 offen sc1")
    a("s_mov_b64 exec, -1\ns_waitcnt vmcnt(0)")
    a("L_noclear:")
    for r in range(4, 96): a(f"v_mov_b32 v{ACC+r}, 0")
    a(f"s_lshl_b32 s61, s60, 11\ns_lshl_b32 s62, s{S_XCD}, 18\ns_add_u32 s61, s61, s62\ns_add_u32 s61, s61, {WS_KVT}")
    a("v_lshlrev_b32 v8, 10, v2\nv_lshl_add_u32 v8, v1, 4, v8")
    a(f"s_lshl_b32 s64, s63, 4\ns_add_u32 s64, s64, {WS_STATS}\nv_lshlrev_b32 v9, 3, v2")
    a("s_waitcnt vmcnt(10)")
    stamp("kvland")
    KF, TW, VF, KS = 48, 72, 80, 96
    for i in range(11): a(f"v_lshlrev_b32 v{KF+2*i}, 16, v{16+i}\nv_and_b32 v{KF+2*i+1}, 0xffff0000, v{16+i}")
    for c in range(2):
        for hh in range(2):
            a(f"v_lshlrev_b32 v{TW+4*hh+c}, 16, v{36+2*c+hh}\nv_and_b32 v{TW+4*hh+2+c}, 0xffff0000, v{36+2*c+hh}")
    for i in range(8):
        a(f"v_pk_mul_f32 {vr(KS+2*i,2)}, {vr(KF+2*i,2)}, {vr(TW+6,2)}")
    for jt in (2, 1, 0):
        for i in range(8):
            a(f"v_pk_fma_f32 {vr(KS+2*i,2)}, {vr(KF+2*(i+3-jt),2)}, {vr(TW+2*jt,2)}, {vr(KS+2*i,2)}")
    a("s_waitcnt vmcnt(2)")
    for i in range(8): a(f"v_lshlrev_b32 v{VF+2*i}, 16, v{28+i}\nv_and_b32 v{VF+2*i+1}, 0xffff0000, v{28+i}")
    for i in range(8): a(f"v_pk_mul_f32 {vr(KS+2*i,2)}, {vr(KS+2*i,2)}, {vr(VF+2*i,2)}")
    for c in range(2):
        for m in range(4):
            a(f"v_cvt_pk_bf16_f32 v{16+4*c+m}, v{KS+2*(7-2*m)+c}, v{KS+2*(6-2*m)+c}")
        a(f"buffer_store_dwordx4 {vr(16+4*c,4)}, v8, s[{S_WS}:{S_WS+3}], s61 offen offset:{512*c} sc1")
    stamp("kvstored")
    a("s_waitcnt vmcnt(2)")
    SF = 48
    for i in range(8): a(f"v_lshlrev_b32 v{SF+2*i}, 16, v{40+i}\nv_and_b32 v{SF+2*i+1}, 0xffff0000, v{40+i}")
    def reduce32(src):
        a(f"v_add_f32 v{src}, v{src}, v{src+1}\ns_nop 1")
        for ctl in ("row_ror:8", "row_ror:4", "row_ror:2", "row_ror:1"):
            a(f"v_add_f32_dpp v{src}, v{src}, v{src} {ctl} row_mask:0xf bank_mask:0xf\ns_nop 1")
        a(f"v_mov_b32 v{src+1}, v{src}\ns_nop 1\nv_permlane16_swap_b32 v{src}, v{src+1}\nv_add_f32 v{src}, v{src}, v{src+1}")
    for i in range(4): a(f"v_pk_add_f32 {vr(64+2*i,2)}, {vr(SF+2*i,2)}, {vr(SF+8+2*i,2)}")
    a("v_pk_add_f32 v[64:65], v[64:65], v[68:69]\nv_pk_add_f32 v[66:67], v[66:67], v[70:71]\nv_pk_add_f32 v[64:65], v[64:65], v[66:67]")
    reduce32(64)
    a("v_mul_f32 v64, 0x3b000000, v64")
    for i in range(8): a(f"v_pk_add_f32 {vr(SF+2*i,2)}, {vr(SF+2*i,2)}, v[64:65] op_sel_hi:[1,0] neg_lo:[0,1] neg_hi:[0,1]")
    a(f"v_pk_mul_f32 v[66:67], {vr(SF,2)}, {vr(SF,2)}\nv_pk_mul_f32 v[68:69], {vr(SF+2,2)}, {vr(SF+2,2)}")
    for i in range(2, 8): a(f"v_pk_fma_f32 {vr(66+2*(i&1),2)}, {vr(SF+2*i,2)}, {vr(SF+2*i,2)}, {vr(66+2*(i&1),2)}")
    a("v_pk_add_f32 v[66:67], v[66:67], v[68:69]")
    reduce32(66)
    a("v_mul_f32 v66, 0x3b000000, v66")
    a("v_cvt_pk_bf16_f32 v66, v64, v66\nv_lshlrev_b32 v64, 16, v66\nv_and_b32 v66, 0xffff0000, v66\nv_add_f32 v66, 0x3727c5ac, v66")
    a("v_cvt_pk_bf16_f32 v66, v66, v66\nv_and_b32 v66, 0xffff0000, v66\nv_sqrt_f32 v66, v66\ns_nop 0")
    a("v_cvt_pk_bf16_f32 v66, v66, v66\nv_and_b32 v66, 0xffff0000, v66\nv_rcp_f32 v65, v66")
    a("s_mov_b32 exec_lo, 1\ns_mov_b32 exec_hi, 1")
    a(f"buffer_store_dwordx2 v[64:65], v9, s[{S_WS}:{S_WS+3}], s64 offen sc1")
    a("s_mov_b64 exec, -1")
    TWs, CWs, C3 = 62, 63, 64
    a(f"s_and_b32 s{TWs}, s3, 1\ns_lshr_b32 s{CWs}, s3, 1\ns_mul_i32 s{C3}, s{CWs}, 3")
    a("v_and_b32 v1, 15, v0\nv_lshrrev_b32 v2, 4, v0")
    a("v_lshrrev_b32 v3, 1, v1\nv_xor_b32 v3, v3, v2\nv_lshlrev_b32 v3, 4, v3\nv_lshl_add_u32 v3, v1, 7, v3")
    a(f"s_lshl_b32 s60, s{TWs}, 13\nv_add_u32 v4, s60, v3\nv_xor_b32 v5, 64, v4")
    a("v_lshrrev_b32 v3, 2, v1\nv_lshl_add_u32 v3, v2, 3, v3\nv_mul_u32_u24 v3, 192, v3\nv_and_b32 v6, 3, v1\nv_lshl_add_u32 v3, v6, 3, v3")
    a(f"v_add_u32 v3, {GOFF}, v3\nv_and_b32 v6, 1, v2\ns_add_u32 s60, s{C3}, 1")
    a(f"v_xor_b32 v7, s60, v6\nv_xor_b32 v6, s{C3}, v6\nv_lshl_add_u32 v6, v6, 5, v3\nv_lshl_add_u32 v7, v7, 5, v3")
    for q in range(4): a(f"v_mov_b32 v{8+q}, v{4+q}")
    a(f"s_mov_b32 s65, {STAGE}\ns_mov_b32 s66, 4")
    a("s_setprio 1")
    a("s_waitcnt lgkmcnt(0)")
    stamp("p0done")
    a("s_barrier")
    stamp("Bstart")
    t = LgkmTracker(a)
    def xread(st, i, ks):
        r = XF + 32 * st + 8 * i + 4 * ks
        t.issue(f"ds_read_b128 {vr(r,4)}, v{8+ks} offset:{2048*i}", ("x", st, i, ks))
    def wread(j, ks, h):
        jj, gu = j >> 1, j & 1
        r = WF + 8 * (j % 3) + 4 * ks + 2 * h
        off = gu * (UOFF - GOFF) + ks * 6144 + h * 768 + (64 if jj == 2 else 0)
        t.issue(f"ds_read_b64_tr_b16 {vr(r,2)}, v{11 if jj == 1 else 10} offset:{off}", ("w", j % 3, ks, h))
    def first_reads(st):
        out = [lambda: wread(0, 0, 0), lambda: wread(0, 0, 1), lambda: xread(st, 0, 0), lambda: wread(0, 1, 0), lambda: wread(0, 1, 1), lambda: xread(st, 0, 1)]
        for i in range(1, 4):
            for ks in range(2): out.append(lambda i=i, ks=ks: xread(st, i, ks))
        return out
    for f in first_reads(0): f()
    entry_q = list(t.q)
    a(".p2align 3\nL_xloop:")
    BAR = 34
    for st in range(2):
        fill = {}
        def put(slot, f): fill.setdefault(slot, []).append(f)
        for j, base in ((1, 0), (2, 4), (3, 8), (4, 16), (5, 24)):
            k = 0
            for ks in range(2):
                for h in range(2):
                    put(base + k, (lambda j=j, ks=ks, h=h: wread(j, ks, h))); k += 1
        for k, f in enumerate(first_reads(1 - st)): put(BAR + 1 + k, f)
        for q in range(4): put(28 + q, lambda q=q: a(f"v_add_u32 v{8+q}, s65, v{4+q}"))
        put(32, lambda: a(f"s_add_u32 s65, s65, {STAGE}\ns_cmp_eq_u32 s65, {3*STAGE}"))
        put(33, lambda: a("s_cselect_b32 s65, 0, s65"))
        if st == 1:
            put(13, lambda: a("s_sub_u32 s66, s66, 1"))
            put(34, lambda: a("s_cmp_lg_u32 s66, 0"))
        m = 0
        for j in range(6):
            for i in range(4):
                for ks in range(2):
                    t.need({("w", j % 3, ks, 0), ("w", j % 3, ks, 1), ("x", st, i, ks)})
                    c = ACC + 16 * j + 4 * i
                    a(f"v_mfma_f32_16x16x32_bf16 {vr(c,4)}, {vr(WF + 8*(j%3) + 4*ks, 4)}, {vr(XF + 32*st + 8*i + 4*ks, 4)}, {vr(c,4)}")
                    for f in fill.get(m, []): f()
                    if m == BAR:
                        t.q = []
                        a("s_waitcnt vmcnt(0) lgkmcnt(0)")
                        if st == 1: a("s_cbranch_scc0 L_xnobar")
                        a("s_barrier")
                        if st == 1: a("L_xnobar:")
                    m += 1
    assert t.q == entry_q
    a("s_cbranch_scc1 L_xloop")
    a("s_setprio 0")
    a(f"s_lshl2_add_u32 s60, s3, {L_FLG}\nv_mov_b32 v14, s60\ns_xor_b32 s60, s60, 4\nv_mov_b32 v12, s60\nv_and_b32 v15, 3, v0\nv_lshlrev_b32 v15, 2, v15\nv_add_u32 v15, {L_FLG}, v15")
    CSR, MUR = 104, 128
    a(f"s_lshl_b32 s60, s{C3}, 6\ns_add_u32 s60, s60, {L_CS}\nv_lshl_add_u32 v8, v2, 4, s60")
    a(f"s_lshl_b32 s60, s{TWs}, 8\ns_add_u32 s60, s60, {L_MU}\nv_lshl_add_u32 v9, v1, 2, s60")
    a("s_waitcnt lgkmcnt(0)")
    stamp("G1end")
    lds_set(14, FL_XDONE)
    for i in range(4): a(f"ds_read_b32 v{MUR+i}, v9 offset:{64*i}")
    for jj in range(3):
        for gu in range(2): a(f"ds_read_b128 {vr(CSR+8*jj+4*gu,4)}, v8 offset:{384*gu+64*jj}")
    a("v_and_b32 v3, 1, v2\nv_mul_u32_u24 v3, 44032, v3\nv_lshrrev_b32 v10, 1, v2\nv_lshl_add_u32 v3, v10, 8, v3\nv_lshl_add_u32 v3, v1, 4, v3")
    a(f"s_lshl1_add_u32 s67, s{S_MI}, s{TWs}\ns_mul_i32 s60, s67, 176128\ns_mul_i32 s68, s{S_FI}, 6\ns_add_u32 s68, s68, s{C3}")
    a(f"s_lshl_b32 s61, s68, 9\ns_add_u32 s60, s60, s61\ns_add_u32 s60, s60, {WS_H}\ns_add_u32 s61, s60, 88064")
    for jj in range(3):
        a(f"s_cmp_ge_u32 s68, {86 - jj}\ns_cbranch_scc1 L_xstored")
        a(f"s_waitcnt lgkmcnt({4 - 2*jj})")
        for ip in range(2):
            d = 16 + 8 * jj + 4 * ip
            for b in range(2):
                i = 2 * ip + b
                g = ACC + 32 * jj + 4 * i; u = g + 16
                mu = f"{vr(MUR + 2*ip, 2)}"
                sel = f"op_sel:[{b},0,0] op_sel_hi:[{b},1,1] neg_lo:[1,0,0] neg_hi:[1,0,0]"
                for hh in range(2):
                    a(f"v_pk_fma_f32 {vr(g+2*hh,2)}, {mu}, {vr(CSR+8*jj+2*hh,2)}, {vr(g+2*hh,2)} {sel}")
                    a(f"v_pk_fma_f32 {vr(u+2*hh,2)}, {mu}, {vr(CSR+8*jj+4+2*hh,2)}, {vr(u+2*hh,2)} {sel}")
                a(f"v_pk_mul_f32 {vr(g,2)}, {vr(g,2)}, {vr(u,2)}\nv_pk_mul_f32 {vr(g+2,2)}, {vr(g+2,2)}, {vr(u+2,2)}")
                a(f"v_cvt_pk_bf16_f32 v{d+2*b}, v{g}, v{g+1}\nv_cvt_pk_bf16_f32 v{d+2*b+1}, v{g+2}, v{g+3}")
            a(f"s_nop 1\nv_permlane16_swap_b32 v{d}, v{d+2}\nv_permlane16_swap_b32 v{d+1}, v{d+3}")
            a(f"buffer_store_dwordx4 {vr(d,4)}, v3, s[{S_WS}:{S_WS+3}], s{60 if ip == 0 else 61} offen offset:{512*jj} sc1")
    a("L_xstored:")
    stamp("hstored")
    TH, KH = TWs, CWs
    a(f"s_lshl_b32 s60, s67, 7\ns_lshl1_add_u32 s61, s{S_FI}, s{CWs}\ns_lshl2_add_u32 s60, s61, s60\ns_add_u32 s60, s60, {F_H}\nv_mov_b32 v10, s60")
    a(f"s_lshl_b32 s60, s{S_TT2}, 7\ns_mul_i32 s61, s{KH}, 56\ns_add_u32 s60, s60, s61\ns_add_u32 s60, s60, {F_H}\nv_min_u32 v11, 14, v0\nv_lshl_add_u32 v11, v11, 2, s60")
    a("v_and_b32 v3, 1, v2\nv_lshlrev_b32 v3, 1, v3\nv_and_b32 v8, 7, v0\nv_xor_b32 v8, v8, v3\nv_lshlrev_b32 v8, 4, v8\nv_lshrrev_b32 v3, 3, v0\nv_lshl_add_u32 v8, v3, 10, v8")
    a(f"s_lshl_b32 s60, s{TH}, 14\ns_lshl_b32 s61, s{S_DB2}, 7\ns_add_u32 s60, s60, s61\nv_add_u32 v8, s60, v8\nv_xor_b32 v9, 64, v8\nv_add_u32 v9, 8192, v9")
    a("v_lshrrev_b32 v3, 2, v1\nv_lshl_add_u32 v3, v2, 3, v3\nv_lshlrev_b32 v4, 7, v3\nv_and_b32 v3, 3, v1\nv_lshl_add_u32 v4, v3, 3, v4")
    a("v_and_b32 v3, 1, v2\nv_lshlrev_b32 v3, 1, v3\nv_lshrrev_b32 v5, 3, v1\nv_or_b32 v3, v3, v5\nv_lshl_add_u32 v4, v3, 5, v4")
    a(f"s_mul_i32 s69, s{KH}, 20480\ns_add_u32 s60, s69, {2*STAGE}\nv_add_u32 v4, s60, v4")
    a("v_xor_b32 v5, 32, v4\nv_xor_b32 v6, 64, v4\nv_xor_b32 v7, 96, v4")
    NS, S0, R0 = 70, 71, 72
    a(f"s_sub_u32 s{NS}, 22, s{KH}\ns_mul_i32 s{S0}, s{KH}, 22\ns_sub_u32 s60, s{S_R2}, s{NS}\ns_cselect_b32 s{R0}, s{S_R2}, s60")
    a("s_waitcnt vmcnt(0) lgkmcnt(0)\ns_mov_b64 exec, 1")
    a(f"buffer_store_dword v13, v10, s[{S_WS}:{S_WS+3}], 0 offen sc1")
    a("s_mov_b64 exec, -1")
    stamp("hflag")
    lds_wait(15, FL_XDONE, 16)
    def step_adv(reg, k):
        a(f"s_add_u32 s{reg}, s{reg}, {k}\ns_sub_u32 s60, s{reg}, s{NS}\ns_cselect_b32 s{reg}, s{reg}, s60")
    def wd_dma(ldsbase_s, ldsoff):
        a(f"s_add_u32 s61, s73, s{S0}\ns_lshl_b32 s61, s61, 15\ns_add_u32 m0, s{ldsbase_s}, {ldsoff}\ns_nop 0")
        a(f"buffer_load_dwordx4 v8, s[{S_WD}:{S_WD+3}], s61 offen lds")
        a("s_add_u32 m0, m0, 1024\ns_nop 0")
        a(f"buffer_load_dwordx4 v9, s[{S_WD}:{S_WD+3}], s61 offen lds")
    a(f"s_lshl_b32 s60, s{TH}, 11\ns_add_u32 s74, s69, s60\ns_lshl_b32 s61, s{KH}, 12\ns_add_u32 s75, s60, s61\ns_mov_b32 s68, s60\ns_mov_b32 s73, s{R0}")
    step_adv(73, 5)
    for i in range(5, 15):
        wd_dma(74, ((i - 5) // 5) * STAGE + ((i - 5) % 5) * 4096)
        step_adv(73, 1)
    wd_dma(75, L_E)
    step_adv(73, 1)
    a(f"s_cmp_lg_u32 s{KH}, 0\ns_cbranch_scc1 L_xno21\ns_mov_b32 s67, s73")
    step_adv(73, 5)
    wd_dma(68, L_E + 8192)
    a("s_mov_b32 s73, s67\nL_xno21:")
    stamp("wdissued")
    lds_wait(15, FL_YB0, 16)
    stamp("b0seen")
    PH, DB, HF, A2 = 144, 112, 16, 224
    def wdread(dst, dt, h, off, tag):
        t.issue(f"ds_read_b64_tr_b16 {vr(dst + 4*dt + 2*h, 2)}, v{4+dt} offset:{off + 512*h}", tag)
    t = LgkmTracker(a)
    for i in range(5):
        for dt in range(4):
            for h in range(2): wdread(PH + 16 * i, dt, h, 4096 * i, ("p",))
    t.drain()
    lds_set(14, FL_XPRE)
    lds_wait(12, FL_XPRE, 16)
    for i in range(16, 21):
        wd_dma(74, 2 * STAGE + (i - 16) * 4096)
        if i < 20: step_adv(73, 1)
    a(f"s_lshl1_add_u32 s60, s{S_TT2}, s{TH}\ns_mul_i32 s61, s60, 88064\ns_lshl_b32 s67, s{S0}, 10\ns_add_u32 s61, s61, s67\ns_add_u32 s61, s61, {WS_H}")
    a("v_lshl_add_u32 v8, v0, 4, s61\nv_add_u32 v9, 44032, v8")
    a(f"s_lshl1_add_u32 s75, s60, s{KH}\ns_lshl_b32 s61, s75, 7\ns_add_u32 s61, s61, {WS_STATS}\nv_lshl_add_u32 v10, v1, 3, s61")
    for q in range(4): a(f"v_subrev_u32 v{4+q}, {2*STAGE}, v{4+q}")
    stamp("prepoll")
    gpoll(11, S_WS, 16)
    stamp("hready")
    lds_set(14, FL_XDMA)
    a(f"s_mov_b32 s73, s{R0}")
    def hreg(i): return HF + 8 * i if i < 12 else PH + 8 * (i - 12)
    vq = []
    def hload(i):
        if i == 21:
            a(f"s_lshl_b32 s61, s73, 10\ns_cmp_lg_u32 s{KH}, 0\ns_cselect_b32 s61, 0x40000000, s61")
        else:
            a("s_lshl_b32 s61, s73, 10")
        a(f"buffer_load_dwordx4 {vr(hreg(i),4)}, v8, s[{S_WS}:{S_WS+3}], s61 offen sc1")
        a(f"buffer_load_dwordx4 {vr(hreg(i)+4,4)}, v9, s[{S_WS}:{S_WS+3}], s61 offen sc1")
        vq.extend([(i, 0), (i, 1)])
        if i < 21: step_adv(73, 1)
    def vneed(tag):
        if tag in vq:
            k = vq.index(tag)
            n = len(vq) - 1 - k
            a(f"s_waitcnt vmcnt({n})")
            del vq[:k + 1]
    a(f"buffer_load_dwordx2 v[10:11], v10, s[{S_WS}:{S_WS+3}], 0 offen sc1")
    for i in range(12): hload(i)
    stamp("hissued")
    lds_wait(15, FL_XDMA, 3)
    stamp("xdma")
    t = LgkmTracker(a)
    def slot(i):
        if 5 <= i < 15: return ("R01", ((i - 5) // 5) * STAGE + ((i - 5) % 5) * 4096)
        if i == 15: return ("E", 0)
        if i < 21: return ("R2", (i - 16) * 4096)
        return ("E2", 0)
    region = ["R01"]
    a(f"s_lshl_b32 s60, s{KH}, 14\ns_sub_u32 s67, {L_E}, s60")
    a(f"s_sub_u32 s68, s67, {2*STAGE}")
    a(f"s_sub_u32 s69, {L_E + 8192 - 2*STAGE}, s69")
    def step_reads(i):
        reg, off = slot(i)
        out = []
        if reg != region[0]:
            op = {"E": "v_add_u32 v{r}, s67, v{r}", "R2": "v_subrev_u32 v{r}, s68, v{r}", "E2": "v_add_u32 v{r}, s69, v{r}"}[reg]
            region[0] = reg
            pre = [op.format(r=4 + q) for q in range(4)]
        else:
            pre = [None] * 4
        for dt in range(4):
            for h in range(2):
                def f(dt=dt, h=h):
                    if h == 0 and pre[dt]: a(pre[dt])
                    wdread(DB + 16 * (i & 1), dt, h, off, ("d", i & 1, dt, h))
                out.append(f)
        return out
    a("s_setprio 1")
    for i in range(22):
        nxt = step_reads(i + 1) if 5 <= i + 1 < 22 else []
        for ts in range(2):
            for dt in range(4):
                if dt == 0: vneed((i, ts))
                if i >= 5: t.need({("d", i & 1, dt, 0), ("d", i & 1, dt, 1)})
                A = (PH + 16 * i if i < 5 else DB + 16 * (i & 1)) + 4 * dt
                c = A2 + 16 * ts + 4 * dt
                a(f"v_mfma_f32_16x16x32_bf16 {vr(c,4)}, {vr(A,4)}, {vr(hreg(i)+4*ts,4)}, {'0' if i == 0 else vr(c,4)}")
                if nxt: nxt.pop(0)()
        if i < 5:
            hload(12 + 2 * i); hload(13 + 2 * i)
    a("s_setprio 0")
    stamp("G2end")
    a(f"s_lshl_b32 s60, s3, 12\ns_add_u32 s60, s60, {L_RED}\nv_lshl_add_u32 v4, v0, 4, s60\nv_xor_b32 v5, 8192, v4")
    a("v_lshrrev_b32 v3, 2, v1\nv_lshl_add_u32 v3, v2, 2, v3\nv_bfe_u32 v6, v3, 1, 2\ns_and_b32 s61, s75, 3\nv_xor_b32 v6, s61, v6\nv_lshlrev_b32 v6, 4, v6\nv_lshl_add_u32 v6, v3, 7, v6")
    a(f"v_bfe_u32 v3, v1, 1, 1\nv_lshl_add_u32 v6, v3, 6, v6\nv_and_b32 v3, 1, v1\nv_lshl_add_u32 v6, v3, 3, v6\nv_add_u32 v6, {L_YL}, v6")
    a("v_lshrrev_b32 v3, 1, v2\nv_lshrrev_b32 v7, 1, v1\nv_xor_b32 v7, v7, v3\nv_lshlrev_b32 v7, 4, v7\nv_lshl_add_u32 v7, v1, 7, v7\nv_and_b32 v3, 1, v2\nv_lshl_add_u32 v7, v3, 3, v7")
    a(f"s_lshl_b32 s61, s61, 11\ns_add_u32 s61, s61, {L_XL}\nv_add_u32 v7, s61, v7\nv_xor_b32 v8, 32, v7\nv_xor_b32 v9, 64, v7\nv_xor_b32 v12, 96, v7")
    a("s_barrier")
    a(f"s_cmp_eq_u32 s{KH}, 0\ns_cbranch_scc1 L_xsend0")
    for i in range(4): a(f"ds_write_b128 v4, {vr(A2+4*i,4)} offset:{1024*i}")
    a("s_waitcnt lgkmcnt(0)")
    for i in range(16): a(f"v_mov_b32 v{A2+i}, v{A2+16+i}")
    a("s_branch L_xsent")
    a("L_xsend0:")
    for i in range(4): a(f"ds_write_b128 v4, {vr(A2+16+4*i,4)} offset:{1024*i}")
    a("s_waitcnt lgkmcnt(0)")
    a("L_xsent:")
    a("s_barrier")
    stamp("Z1")
    xaddr = [7, 8, 9, 12]
    for dt in range(4):
        a(f"ds_read_b128 {vr(16+4*dt,4)}, v5 offset:{1024*dt}")
        a(f"ds_read_b64 {vr(32+2*dt,2)}, v{xaddr[dt]}")
        a(f"ds_read_b64_tr_b16 {vr(40+2*dt,2)}, v6 offset:{2048*dt}")
    a(f"s_lshl_b32 s60, s75, 14\ns_lshl_b32 s61, s{S_DB2}, 7\ns_add_u32 s60, s60, s61")
    a("v_and_b32 v3, 1, v2\nv_lshlrev_b32 v3, 5, v3\nv_lshl_add_u32 v3, v1, 10, v3\nv_lshrrev_b32 v4, 1, v2\nv_lshl_add_u32 v3, v4, 4, v3")
    a("v_mul_f32 v15, v11, v11\nv_mul_f32 v14, v15, v11\nv_mul_f32 v15, 0xbfb8aa3b, v15")
    for dt in range(4):
        a(f"s_waitcnt lgkmcnt({9 - 3*dt})")
        o = A2 + 4 * dt; X = 48; Yv = 52; E = 56
        a(f"v_pk_add_f32 {vr(o,2)}, {vr(o,2)}, {vr(16+4*dt,2)}\nv_pk_add_f32 {vr(o+2,2)}, {vr(o+2,2)}, {vr(18+4*dt,2)}")
        for hh in range(2):
            a(f"v_lshlrev_b32 v{X+2*hh}, 16, v{32+2*dt+hh}\nv_and_b32 v{X+2*hh+1}, 0xffff0000, v{32+2*dt+hh}")
            a(f"v_lshlrev_b32 v{Yv+2*hh}, 16, v{40+2*dt+hh}\nv_and_b32 v{Yv+2*hh+1}, 0xffff0000, v{40+2*dt+hh}")
        for hh in range(2):
            a(f"v_pk_mul_f32 {vr(E+2*hh,2)}, {vr(o+2*hh,2)}, v[14:15] op_sel:[0,1] op_sel_hi:[1,1]")
        for r in range(4): a(f"v_exp_f32 v{E+r}, v{E+r}")
        for hh in range(2):
            a(f"v_pk_mul_f32 {vr(Yv+2*hh,2)}, {vr(Yv+2*hh,2)}, v[14:15] op_sel_hi:[1,0]")
            a(f"v_pk_add_f32 {vr(60+2*hh,2)}, {vr(X+2*hh,2)}, v[10:11] op_sel_hi:[1,0] neg_lo:[0,1] neg_hi:[0,1]")
        for hh in range(2):
            a(f"v_pk_add_f32 {vr(E+2*hh,2)}, {vr(E+2*hh,2)}, 1.0 op_sel_hi:[1,0]")
        for r in range(4): a(f"v_rcp_f32 v{E+r}, v{E+r}")
        for hh in range(2):
            a(f"v_pk_mul_f32 {vr(Yv+2*hh,2)}, {vr(Yv+2*hh,2)}, {vr(60+2*hh,2)}")
            a(f"v_pk_mul_f32 {vr(o+2*hh,2)}, {vr(o+2*hh,2)}, {vr(E+2*hh,2)}")
        for hh in range(2):
            a(f"v_pk_fma_f32 {vr(o+2*hh,2)}, {vr(o+2*hh,2)}, {vr(Yv+2*hh,2)}, {vr(X+2*hh,2)}")
        d = 64 + 2 * dt
        a(f"v_cvt_pk_bf16_f32 v{d}, v{o}, v{o+1}\nv_cvt_pk_bf16_f32 v{d+1}, v{o+2}, v{o+3}")
        if dt & 1:
            d = 64 + 2 * (dt - 1)
            a(f"s_nop 1\nv_permlane16_swap_b32 v{d}, v{d+2}\nv_permlane16_swap_b32 v{d+1}, v{d+3}")
            a(f"buffer_store_dwordx4 {vr(d,4)}, v3, s[{S_OUT}:{S_OUT+3}], s60 offen offset:{32*(dt-1)}")
    if prof:
        a("s_waitcnt vmcnt(0)")
        stamp("end")
        dump_stamps(0)
    a("L_end:")
    return a.text()


def full_text(opt=None):
    ref = open(f"cdna_kernels/{NAME}.s.ref").read().split("\n")
    head = [l for l in ref if l.startswith(";") and "@launch" not in l and not l.startswith("; Override") and not l.startswith("; grid=")]
    out = "\n".join(head) + "\n"
    out += f"; @launch grid=(256,1,1) block=(512,1,1) lds={LDS_BYTES}\n"
    out += f""".amdgcn_target "amdgcn-amd-amdhsa--gfx950"
.text
.globl {NAME}_kernel
.p2align 8
.type {NAME}_kernel,@function
{NAME}_kernel:
"""
    out += gen(opt)
    out += f"""    s_endpgm
.section .rodata,"a"
.p2align 6
.amdhsa_kernel {NAME}_kernel
  .amdhsa_next_free_vgpr 256
  .amdhsa_next_free_sgpr 102
  .amdhsa_accum_offset 256
  .amdhsa_group_segment_fixed_size 0
  .amdhsa_kernarg_size 104
  .amdhsa_user_sgpr_count 2
  .amdhsa_user_sgpr_kernarg_segment_ptr 1
  .amdhsa_system_sgpr_workgroup_id_x 1
.end_amdhsa_kernel
"""
    return out


if __name__ == "__main__":
    import hazard, json
    opt = json.loads(sys.argv[2]) if len(sys.argv) > 2 else {}
    txt = full_text(opt)
    bad = hazard.check(txt)
    for b in bad: print("HAZARD", b)
    path = sys.argv[1] if len(sys.argv) > 1 else f"cdna_kernels/{NAME}.s"
    open(path, "w").write(txt)
    print("wrote", path, len(txt), "bytes")
```

```python
import sys
sys.path.insert(0, "work")
from asmlib import *

NAME = "recurrent_scan__ssm_conv_h3__glu_gated_bilinear__prompt"

C_X, C_ST, C_H, C_Y = 0, 1024, 3072, 11264
NCNT = 152
WS_STATS = 0x38000
WS_CSP = 0x8000
WS_PROF = 0x40000
WS_KVT = 0x100000
WS_YT = 0x300000
WS_H = 0x500000
WS_SIZE = 0xB00000
STAGE = 40960
GOFF, UOFF = 16384, 28672
L_KC = 122880
L_U = 139520
L_CS = 148736
L_MU = 149504
L_FLG = 150016
L_KVS = L_KC
USTR = 4608
L_E = 150528
L_YL = L_KC
L_XL = L_KC + 8192
L_RED = 0
LDS_BYTES = 163840
FL_XDONE, FL_XPRE, FL_XDMA, FL_YRDY, FL_YB0, FL_YKA, FL_YKB, FL_YFIN, FL_XEPI, FL_XMID = 0, 16, 32, 48, 64, 80, 96, 112, 128, 144
S_Q, S_K, S_V, S_SK, S_SM, S_WG, S_WU, S_WD, S_OUT, S_DBG, S_WS, S_SD = 4, 8, 12, 16, 20, 24, 28, 32, 36, 40, 44, 48
S_XCD, S_J, S_MI, S_FI, S_ROT, S_TT2, S_DB2, S_R2 = 50, 51, 52, 53, 54, 55, 56, 57
SPIN_MAX = 200000


def srdw(a, r, size):
    a(f"s_mov_b32 s{r+2}, {size}\ns_mov_b32 s{r+3}, 0x20000")


def gen(opt=None):
    opt = opt or {}
    prof = opt.get("prof", 0)
    a = Asm()
    nstamp = [0]

    names = {0: [], 1: []}
    role_now = [1]
    def stamp(name):
        if prof:
            k = len(names[role_now[0]]) + 1
            assert k < 24
            names[role_now[0]].append(name)
            a(f"s_memrealtime s[76:77]\ns_waitcnt lgkmcnt(0)\ns_mov_b32 s{78+k}, s76")
    global STAMP_NAMES
    STAMP_NAMES = names

    def dump_stamps(role):
        if not prof: return
        amp = opt.get("amp")
        if amp:
            if amp[0] == role:
                k = names[role].index(amp[1]) + 1
                lab = a.label("amp"); out = a.label("ampo")
                a(f"s_and_b32 s60, s3, 3\ns_cmp_lg_u32 s60, 0\ns_cbranch_scc1 {out}\ns_cmp_lg_u32 s2, {amp[3]}\ns_cbranch_scc1 {out}")
                a(f"s_sub_u32 s60, s{78+k}, s78\ns_min_u32 s60, s60, 10000\ns_mul_i32 s60, s60, {amp[2]}\ns_add_u32 s60, s60, {amp[4] if len(amp) > 4 else 0}")
                a(f"{lab}:\ns_memrealtime s[76:77]\ns_waitcnt lgkmcnt(0)\ns_sub_u32 s61, s76, s78\ns_cmp_lt_u32 s61, s60\ns_cbranch_scc1 {lab}\n{out}:")
            return
        lab = a.label("nodump")
        a(f"s_and_b32 s60, s3, 3\ns_cmp_lg_u32 s60, {opt.get('profwave', 0)}\ns_cbranch_scc1 {lab}")
        a(f"s_lshl_b32 s60, s2, 8\ns_add_u32 s60, s60, {WS_PROF + 128*role}\nv_mov_b32 v3, 0\ns_mov_b64 exec, 1")
        for g in range(6):
            for i in range(4):
                a(f"v_mov_b32 v{16+4*g+i}, s{78+4*g+i}")
            a(f"buffer_store_dwordx4 v[{16+4*g}:{19+4*g}], v3, s[{S_WS}:{S_WS+3}], s60 offen offset:{16*g}")
        a(f"{lab}:")

    def lds_set(addr_v, off):
        a(f"ds_write_b32 v{addr_v}, v13 offset:{off}")

    def lds_wait(addr_v, off, tmp):
        lab = a.label("lw"); out = a.label("lwo")
        a(f"s_mov_b32 s60, 0\n{lab}:")
        a(f"ds_read_b32 v{tmp}, v{addr_v} offset:{off}\ns_add_u32 s60, s60, 1\ns_cmp_gt_u32 s60, {SPIN_MAX*8}\ns_cbranch_scc1 {out}")
        a(f"s_waitcnt lgkmcnt(0)\nv_cmp_eq_u32 vcc, 0, v{tmp}\ns_cbranch_vccnz {lab}")
        a(f"{out}:\ns_waitcnt lgkmcnt(0)")

    def ssignal(off_s):
        a(f"s_atomic_add s59, s[{S_WS}:{S_WS+1}], s{off_s}")

    def spoll_issue(off_s):
        a(f"s_waitcnt lgkmcnt(0)\ns_mov_b32 s58, 0\ns_atomic_add s58, s[{S_WS}:{S_WS+1}], s{off_s} glc")

    def spoll_check(off_s, target, sleep=2):
        lab = a.label("sp"); out = a.label("spo")
        a(f"s_mov_b32 vcc_lo, 0\n{lab}:\ns_waitcnt lgkmcnt(0)\ns_cmp_ge_u32 s58, {target}\ns_cbranch_scc1 {out}")
        a(f"s_sleep {sleep}\ns_mov_b32 s58, 0\ns_atomic_add s58, s[{S_WS}:{S_WS+1}], s{off_s} glc")
        a(f"s_add_u32 vcc_lo, vcc_lo, 1\ns_cmp_lt_u32 vcc_lo, {SPIN_MAX}\ns_cbranch_scc1 {lab}\ns_waitcnt lgkmcnt(0)")
        a(f"{out}:")

    def spoll(off_s, target, sleep=2):
        spoll_issue(off_s)
        spoll_check(off_s, target, sleep)

    a("s_cmp_ge_u32 s2, 256\ns_cbranch_scc1 L_end")
    a(f"s_load_dwordx2 s[{S_Q}:{S_Q+1}], s[0:1], 0")
    a(f"s_load_dwordx2 s[{S_WG}:{S_WG+1}], s[0:1], 56")
    a(f"s_load_dwordx2 s[{S_WU}:{S_WU+1}], s[0:1], 64")
    a(f"s_load_dwordx2 s[{S_WS}:{S_WS+1}], s[0:1], 96")
    if prof: a("s_memrealtime s[78:79]")
    a("v_lshrrev_b32 v1, 6, v0\nv_and_b32 v0, 63, v0")
    a(f"s_and_b32 s{S_XCD}, s2, 7\ns_lshr_b32 s{S_J}, s2, 3")
    a("v_readfirstlane_b32 s3, v1")
    a(f"s_and_b32 s58, s2, 1\ns_and_b32 s{S_DB2}, s{S_J}, 7\ns_lshl3_add_u32 s{S_MI}, s58, s{S_DB2}")
    a(f"s_lshr_b32 s59, s{S_XCD}, 1\ns_lshr_b32 s60, s2, 6\ns_lshl2_add_u32 s{S_FI}, s59, s60")
    a(f"s_lshl1_add_u32 s61, s60, s{S_DB2}\ns_and_b32 s{S_ROT}, s61, 7")
    a(f"s_lshl2_add_u32 s{S_TT2}, s{S_XCD}, s60")
    a(f"s_mul_i32 s{S_R2}, s61, 11\ns_lshr_b32 s{S_R2}, s{S_R2}, 2")
    a("s_mov_b32 s59, 1")
    srdw(a, S_Q, 2097152)
    srdw(a, S_WS, WS_SIZE)
    a("s_cmp_lt_u32 s3, 4\ns_cbranch_scc1 L_X")

    YW = 62
    a(f"s_sub_u32 s{YW}, s3, 4")
    srdw(a, S_WG, 1409024)
    srdw(a, S_WU, 1409024)
    a(f"s_mul_i32 s63, s{YW}, 44032\ns_mul_i32 s64, s{S_FI}, 192\ns_add_u32 s63, s63, s64\ns_movk_i32 s65, 2752")
    a("s_sub_u32 s64, s65, s64\ns_lshr_b32 s64, s64, 4\ns_cmp_eq_u32 s53, 15\ns_cselect_b32 s64, 0, s64")
    a("v_mov_b32 v11, 0x80000000")
    for i in range(3):
        a(f"v_add_u32 v1, {64*i}, v0\nv_mul_u32_u24 v2, 43691, v1\nv_lshrrev_b32 v2, 19, v2")
        a("v_mul_u32_u24 v3, 12, v2\nv_sub_u32 v1, v1, v3")
        a("v_lshrrev_b32 v3, 2, v2\nv_and_b32 v3, 2, v3\nv_xor_b32 v1, v1, v3")
        a("v_cmp_gt_u32 vcc, s64, v1\nv_mul_u32_u24 v2, s65, v2\nv_lshl_add_u32 v2, v1, 4, v2\nv_add_u32 v2, s63, v2")
        a(f"v_cndmask_b32 v{8+i}, v11, v2, vcc")
    a("v_lshrrev_b32 v1, 3, v0\nv_and_b32 v2, 7, v0\nv_lshrrev_b32 v3, 4, v0\nv_xor_b32 v2, v2, v3\nv_lshlrev_b32 v2, 4, v2\nv_lshl_add_u32 v4, v1, 10, v2")
    a(f"s_lshl2_add_u32 s63, s{S_MI}, s{YW}\ns_lshl_b32 s63, s63, 15\ns_cmp_eq_u32 s{S_FI}, 15\ns_cselect_b32 s63, 0x80000000, s63")
    a("v_add_u32 v4, s63, v4\nv_xor_b32 v5, 64, v4\nv_add_u32 v5, 8192, v5\nv_add_u32 v6, 16384, v4\nv_add_u32 v7, 16384, v5")
    a(f"s_lshl_b32 s63, s{YW}, 12\ns_mul_i32 s64, s{YW}, 3072\ns_add_u32 s64, s64, {GOFF}")
    a(f"s_mov_b32 s65, s{S_ROT}")

    def chunk(c):
        base = (c % 3) * STAGE
        a(f"s_lshl_b32 s66, s65, 7\ns_mul_i32 s67, s65, 176128\ns_add_u32 m0, s64, {base}\ns_add_u32 s65, s65, 1")
        for i in range(3):
            a(f"buffer_load_dwordx4 v{8+i}, s[{S_WG}:{S_WG+3}], s67 offen lds")
            a(f"s_add_u32 m0, m0, {UOFF-GOFF}\ns_nop 0")
            a(f"buffer_load_dwordx4 v{8+i}, s[{S_WU}:{S_WU+3}], s67 offen lds")
            if i < 2: a(f"s_sub_u32 m0, m0, {UOFF-GOFF-1024}\ns_nop 0")
        a(f"s_add_u32 m0, s63, {base}\ns_and_b32 s65, s65, 7")
        for i in range(4):
            a(f"buffer_load_dwordx4 v{4+i}, s[{S_Q}:{S_Q+3}], s66 offen lds")
            if i < 3: a("s_add_u32 m0, m0, 1024\ns_nop 0")

    a("s_waitcnt lgkmcnt(0)")
    stamp("karg")
    chunk(0)
    stamp("c0issued")
    a(f"s_load_dwordx2 s[{S_SM}:{S_SM+1}], s[0:1], 32\ns_load_dwordx2 s[{S_SD}:{S_SD+1}], s[0:1], 40")
    a(f"s_load_dwordx2 s[{S_WD}:{S_WD+1}], s[0:1], 72\ns_load_dwordx2 s[{S_DBG}:{S_DBG+1}], s[0:1], 88")
    chunk(1)
    stamp("c1issued")
    srdw(a, S_SM, 2097152); srdw(a, S_WD, 1409024); srdw(a, S_DBG, 256)
    a("v_and_b32 v1, 15, v0\nv_lshrrev_b32 v2, 4, v0\nv_mov_b32 v13, 1")
    CH, DH, DCH = 68, 69, 70
    a(f"s_lshr_b32 s{CH}, s{YW}, 1\ns_and_b32 s{DH}, s{YW}, 1")
    a(f"s_and_b32 s60, s{S_J}, 15\ns_lshl1_add_u32 s60, s60, s{CH}\ns_lshr_b32 s61, s{S_J}, 4\ns_lshl1_add_u32 s60, s60, s61")
    a(f"s_lshl_b32 s61, s{S_XCD}, 6\ns_add_u32 s{DCH}, s60, s61")
    a("v_lshrrev_b32 v3, 2, v1\nv_lshl_add_u32 v3, v2, 3, v3\nv_mul_u32_u24 v3, 192, v3\nv_and_b32 v14, 3, v1\nv_lshl_add_u32 v3, v14, 3, v3")
    a(f"s_mul_i32 s60, s{CH}, {UOFF-GOFF}\ns_add_u32 s60, s60, {GOFF}\nv_add_u32 v3, s60, v3")
    a(f"v_and_b32 v14, 1, v2\ns_mul_i32 s60, s{DH}, 3\ns_add_u32 s61, s60, 1")
    a("v_xor_b32 v15, s61, v14\nv_xor_b32 v14, s60, v14\nv_lshl_add_u32 v14, v14, 5, v3\nv_lshl_add_u32 v15, v15, 5, v3")
    for i in range(4): a(f"v_mov_b32 v{16+i}, 0x3f803f80")
    a("s_waitcnt lgkmcnt(0)")
    a(f"s_lshl_b32 s60, s{DCH}, 12\ns_load_dword s71, s[{S_SM}:{S_SM+1}], s60")
    a(f"s_andn2_b32 s61, s{DCH}, 1\ns_lshl_b32 s61, s61, 1\ns_load_dword s72, s[{S_SD}:{S_SD+1}], s61")
    a(f"s_and_b32 s60, s2, 1\ns_lshl1_add_u32 s73, s{S_FI}, s60")
    a(f"s_lshl3_add_u32 s60, s73, s{S_DB2}\ns_mul_i32 s60, s60, 768\ns_mul_i32 s61, s{YW}, 192\ns_add_u32 s60, s60, s61\ns_add_u32 s74, s60, {WS_CSP}")
    a("v_lshlrev_b32 v12, 4, v2")
    a("v_lshrrev_b32 v3, 3, v0\nv_xor_b32 v56, v0, v3\nv_and_b32 v56, 7, v56\nv_lshlrev_b32 v56, 4, v56\nv_lshl_add_u32 v56, v3, 7, v56")
    a(f"s_lshl_b32 s60, s{YW}, 11\ns_add_u32 s60, s60, {L_KVS}\nv_add_u32 v56, s60, v56")
    a("v_and_b32 v57, 7, v0\nv_lshlrev_b32 v57, 4, v57\nv_lshl_add_u32 v57, v3, 12, v57")
    a(f"s_lshl2_add_u32 s60, s{S_XCD}, s{YW}\ns_lshl_b32 s60, s60, 16\ns_lshl_b32 s61, s{S_J}, 7\ns_sub_u32 s60, s60, s61\ns_add_u32 s60, s60, {WS_KVT + 31*128}\nv_add_u32 v57, s60, v57\nv_add_u32 v58, 32768, v57")
    stamp("sloads")
    a("s_waitcnt vmcnt(10) lgkmcnt(0)")
    stamp("c0land")
    a("s_barrier")
    a("ds_read_b128 v[60:63], v56\nds_read_b128 v[64:67], v56 offset:1024")
    for jj in range(3):
        for ks in range(2):
            for h in range(2):
                r = 32 + 8 * jj + 4 * ks + 2 * h
                a(f"ds_read_b64_tr_b16 {vr(r,2)}, v{15 if jj == 1 else 14} offset:{ks*6144 + h*768 + (64 if jj == 2 else 0)}")
    a("s_waitcnt lgkmcnt(12)")
    a(f"buffer_store_dwordx4 v[60:63], v57, s[{S_WS}:{S_WS+3}], 0 offen sc1\nbuffer_store_dwordx4 v[64:67], v58, s[{S_WS}:{S_WS+3}], 0 offen sc1")
    a("s_waitcnt lgkmcnt(0)")
    for ks in range(2):
        for jj in range(3):
            c = 20 + 4 * jj
            a(f"v_mfma_f32_16x16x32_bf16 {vr(c,4)}, {vr(32+8*jj+4*ks,4)}, v[16:19], {'0' if ks == 0 else vr(c,4)}")
    a("s_mov_b32 exec_lo, 0x00010001\ns_mov_b32 exec_hi, 0x00010001\ns_nop 5")
    for jj in range(3):
        a(f"buffer_store_dwordx4 {vr(20+4*jj,4)}, v12, s[{S_WS}:{S_WS+3}], s74 offen offset:{64*jj} sc1")
    a("s_mov_b64 exec, -1")
    chunk(2)
    stamp("c2issued")
    a("s_waitcnt vmcnt(15)\ns_barrier")
    stamp("P0")
    a(f"s_load_dword s58, s[{S_DBG}:{S_DBG+1}], 0")
    chunk(3)
    a("s_waitcnt vmcnt(10)\ns_barrier")
    stamp("P1")
    a(f"s_cmp_lg_u32 s{YW}, 0\ns_cbranch_scc1 L_ynosig")
    a("s_mov_b32 s60, 0\nL_ygo:\ns_waitcnt lgkmcnt(0)\ns_cmp_lg_u32 s58, 0\ns_cbranch_scc1 L_ygook")
    a(f"s_load_dword s58, s[{S_DBG}:{S_DBG+1}], 0 glc\ns_sleep 4\ns_add_u32 s60, s60, 1\ns_cmp_lt_u32 s60, {SPIN_MAX}\ns_cbranch_scc1 L_ygo\nL_ygook:")
    a(f"s_lshl_b32 s60, s{S_XCD}, 7\ns_lshl_b32 s61, s{S_MI}, 7\ns_add_u32 s61, s61, {C_ST}")
    ssignal(60)
    ssignal(61)
    a("L_ynosig:")
    chunk(4)
    a(f"v_mov_b32 v16, 0\nv_lshlrev_b32 v3, 2, v0\ns_mul_i32 s60, s{CH}, {USTR}\ns_lshl_b32 s61, s{DH}, 8\ns_add_u32 s60, s60, s61\ns_add_u32 s60, s60, {L_U + 4096}\nv_add_u32 v17, s60, v3")
    a("ds_write_b32 v17, v16")
    a(f"s_mul_i32 s75, s{YW}, 4160\ns_add_u32 s75, s75, {L_KC}\nv_add_u32 v17, s75, v3\ns_lshl_b32 s71, s71, 16\nv_writelane_b32 v16, s71, 7")
    a(f"s_lshr_b32 s60, 255, s{DH}\ns_mov_b32 exec_lo, s60\ns_mov_b32 exec_hi, 0")
    a("ds_write_b32 v17, v16\ns_mov_b64 exec, -1")
    a("s_waitcnt vmcnt(10)\ns_barrier")
    chunk(5)
    a("v_lshlrev_b32 v18, 2, v0\nv_cmp_gt_u32 vcc, 48, v0")
    a(f"s_mul_i32 s74, s73, 6144\ns_mul_i32 s61, s{YW}, 192\ns_add_u32 s74, s74, s61\ns_add_u32 s74, s74, {WS_CSP}")
    a("v_cndmask_b32 v18, v11, v18, vcc")
    a(f"s_lshl2_add_u32 s60, s{S_MI}, s{YW}\ns_lshl_b32 s60, s60, 8\ns_add_u32 s60, s60, {WS_STATS}\nv_and_b32 v19, 31, v0\nv_lshl_add_u32 v19, v19, 3, s60")
    a(f"s_lshl_b32 s60, s{S_XCD}, 5\ns_add_u32 s60, s60, s{S_J}\ns_lshl2_add_u32 s60, s60, s{YW}\ns_lshl_b32 s60, s60, 11\ns_add_u32 s60, s60, {WS_KVT}\nv_lshl_add_u32 v20, v0, 4, s60")
    a(f"s_lshl_b32 s60, s{DCH}, 12\ns_xor_b32 s61, s{DH}, 1\ns_lshl1_add_u32 s60, s61, s60\nv_lshl_add_u32 v22, v0, 4, s60")
    a(f"s_lshl2_add_u32 s75, s61, s75\ns_add_u32 s75, s75, 28")
    a(f"v_and_b32 v3, 1, v2\ns_lshl_b32 s60, s{DH}, 1\nv_or_b32 v3, s60, v3\nv_lshlrev_b32 v3, 1, v3\nv_and_b32 v23, 7, v0\nv_xor_b32 v23, v23, v3\nv_lshlrev_b32 v23, 4, v23")
    a(f"v_lshrrev_b32 v3, 3, v0\nv_lshl_add_u32 v23, v3, 10, v23\ns_lshl_b32 s60, s{YW}, 13\ns_lshl_b32 s61, s{S_DB2}, 7\ns_add_u32 s60, s60, s61\nv_add_u32 v23, s60, v23")
    a("s_waitcnt vmcnt(10)\ns_barrier")
    a(f"s_lshl_b32 s48, s{S_XCD}, 7\ns_lshl_b32 s61, s{S_MI}, 7\ns_add_u32 s61, s61, {C_ST}\ns_cmp_eq_u32 s{YW}, 0\ns_cselect_b32 s48, s48, s61\ns_cselect_b32 s49, 32, 16")
    a(f"s_cmp_gt_u32 s{YW}, 1\ns_cbranch_scc1 L_ynopoll0")
    spoll_issue(48)
    a("L_ynopoll0:")
    chunk(6)
    a(f"s_mul_i32 s60, s{CH}, 8320\ns_lshl_b32 s61, s{DH}, 8\ns_add_u32 s60, s60, s61\ns_add_u32 s60, s60, {L_KC}")
    a("v_and_b32 v3, 1, v1\nv_mul_u32_u24 v24, 4158, v3\nv_lshl_add_u32 v24, v1, 1, v24\nv_lshl_add_u32 v24, v2, 4, v24\nv_add_u32 v24, s60, v24")
    a("v_add_u32 v25, 1024, v24\nv_add_u32 v26, 2048, v24\nv_add_u32 v27, 3072, v24")
    a(f"s_mul_i32 s60, s{CH}, {USTR}\ns_lshl_b32 s61, s{DH}, 8\ns_add_u32 s60, s60, s61\ns_add_u32 s60, s60, {L_U + 480}\nv_lshlrev_b32 v3, 1, v1\nv_sub_u32 v3, v2, v3\nv_lshl_add_u32 v28, v3, 4, s60")
    a(f"s_cmp_gt_u32 s{YW}, 1\ns_cbranch_scc1 L_ynopoll")
    spoll_check(48, "s49")
    stamp("pollok")
    a("L_ynopoll:")
    a("s_waitcnt vmcnt(10)\ns_barrier")
    chunk(7)
    a("s_add_u32 s61, s74, 3072")
    for r in range(8):
        a(f"buffer_load_dword v{32+r}, v18, s[{S_WS}:{S_WS+3}], s{74 if r < 4 else 61} offen offset:{768*(r%4)} sc1")
    a(f"buffer_load_dword v40, v19, s[{S_WS}:{S_WS+3}], 0 offen sc1")
    a(f"s_mul_i32 s60, s{CH}, {USTR}\ns_lshl_b32 s61, s{DH}, 11\ns_add_u32 s60, s60, s61\ns_add_u32 m0, s60, {L_U}\ns_nop 0")
    a(f"buffer_load_dwordx4 v20, s[{S_WS}:{S_WS+3}], 0 offen sc1 lds")
    a(f"buffer_load_dwordx4 v20, s[{S_WS}:{S_WS+3}], 0 offen offset:1024 sc1 lds")
    a("s_mov_b32 m0, s75\ns_nop 0")
    for i in range(4):
        a(f"buffer_load_dwordx4 v22, s[{S_SM}:{S_SM+3}], 0 offen offset:{1024*i} lds")
    a("s_waitcnt vmcnt(25)\ns_barrier")
    a(f"s_mul_i32 s60, s{YW}, 192\ns_add_u32 s60, s60, {L_CS}\nv_lshl_add_u32 v16, v0, 2, s60")
    a(f"s_lshl_b32 s60, s{YW}, 7\ns_add_u32 s60, s60, {L_MU}\nv_and_b32 v17, 31, v0\nv_lshl_add_u32 v17, v17, 2, s60")
    a("s_waitcnt vmcnt(6)")
    a("v_add_f32 v32, v32, v33\nv_add_f32 v34, v34, v35\nv_add_f32 v36, v36, v37\nv_add_f32 v38, v38, v39\nv_add_f32 v32, v32, v34\nv_add_f32 v36, v36, v38\nv_add_f32 v32, v32, v36")
    a("ds_write_b32 v17, v40")
    a("s_mov_b32 exec_hi, 0xffff\nds_write_b32 v16, v32\ns_mov_b64 exec, -1")
    a("s_waitcnt lgkmcnt(0)")
    stamp("csdone")
    a("s_barrier")
    a(f"s_lshl_b32 s63, s{YW}, 10\ns_add_u32 s63, s63, {2*STAGE}")
    for kh in range(2):
        n = 22 - kh
        a(f"s_sub_u32 s60, s{S_R2}, {n}\ns_cselect_b32 s60, s{S_R2}, s60")
        for i in range(6):
            lo = kh*20480 + i*4096 if i < 5 else L_E + kh*4096 - 2*STAGE
            a(f"s_add_u32 s61, s60, {22*kh}\ns_lshl_b32 s61, s61, 15\ns_add_u32 m0, s63, {lo}\ns_add_u32 s60, s60, 1")
            a(f"buffer_load_dwordx4 v23, s[{S_WD}:{S_WD+3}], s61 offen lds")
            if i < 5: a(f"s_cmp_eq_u32 s60, {n}\ns_cselect_b32 s60, 0, s60")
    stamp("b0issued")
    a(f"s_lshl2_add_u32 s60, s{YW}, {L_FLG}\nv_mov_b32 v14, s60\ns_xor_b32 s60, s60, 4\nv_mov_b32 v12, s60\nv_and_b32 v15, 3, v0\nv_lshlrev_b32 v15, 2, v15\nv_add_u32 v15, {L_FLG}, v15")
    a("s_waitcnt vmcnt(12)")
    lds_set(14, FL_YRDY)
    lds_wait(15, FL_YRDY, 16)
    stamp("yrdy")
    CACC = 224
    def AF(st, g): return 32 + 64 * st + 4 * g
    def BF(st, m): return 64 + 64 * st + 4 * m
    t = LgkmTracker(a)
    def conv_reads(dl):
        st = dl & 1
        out = []
        for g in range(8):
            o = 128 * (g & 1) + 16 * dl
            out.append(lambda g=g, o=o: t.issue(f"ds_read2_b32 {vr(AF(st,g),2)}, v{24+(g>>1)} offset0:{o} offset1:{o+1}", ("a", st, g, 0)))
            out.append(lambda g=g, o=o: t.issue(f"ds_read2_b32 {vr(AF(st,g)+2,2)}, v{24+(g>>1)} offset0:{o+2} offset1:{o+3}", ("a", st, g, 1)))
            out.append(lambda g=g: t.issue(f"ds_read_b128 {vr(BF(st,g),4)}, v28 offset:{(7-g)*512 + 64*dl}", ("b", st, g)))
        return out
    pend = conv_reads(0)
    for f in pend: f()
    pend = []
    t.drain()
    lds_wait(14, FL_XEPI, 16)
    stamp("convstart")
    for dl in range(4):
        st = dl & 1
        if dl < 3: pend = pend + conv_reads(dl + 1)
        m = 0
        for N in range(8):
            for g in range(N + 1):
                M = N - g
                t.need({("a", st, g, 0), ("a", st, g, 1), ("b", st, M)})
                c = CACC + 4 * N
                a(f"v_mfma_f32_16x16x32_bf16 {vr(c,4)}, {vr(AF(st,g),4)}, {vr(BF(st,M),4)}, {'0' if (dl == 0 and g == 0) else vr(c,4)}")
                if pend: pend.pop(0)()
                m += 1
                if dl == 3 and m == 4:
                    t.drain()
                    lds_set(14, FL_YKA)
                    t.q.append(("flag",))
        assert not pend
        if dl == opt.get("b0wait", 2):
            a("s_waitcnt vmcnt(0)")
            lds_set(14, FL_YB0)
            t.q.append(("flag",))
    t.drain()
    stamp("convend")
    lds_wait(12, FL_YKA, 16)
    a(f"s_mul_i32 s60, s{CH}, 8320\ns_add_u32 s60, s60, {L_KC}\ns_lshl_b32 s61, s{DH}, 12\ns_add_u32 s63, s60, s61\ns_xor_b32 s61, s61, 4096\ns_add_u32 s61, s60, s61")
    a("v_lshl_add_u32 v16, v0, 4, s63\nv_lshl_add_u32 v17, v0, 4, s61")
    a(f"s_mul_i32 s60, s{CH}, {USTR}\ns_lshl_b32 s61, s{DH}, 11\ns_sub_u32 s60, s60, s61\ns_add_u32 s60, s60, {L_U + 2*(2044-768)}")
    a("v_lshl_add_u32 v3, v1, 2, v2\nv_lshlrev_b32 v3, 3, v3\nv_sub_u32 v18, s60, v3")
    a("s_setprio 2")
    a(f"s_cmp_eq_u32 s{DH}, 0\ns_cbranch_scc1 L_ysend0")
    for i in range(4): a(f"ds_write_b128 v16, {vr(CACC+4*i,4)} offset:{1024*i}")
    a("s_waitcnt lgkmcnt(0)")
    for i in range(16): a(f"v_mov_b32 v{CACC+i}, v{CACC+16+i}")
    a("s_branch L_ysent")
    a("L_ysend0:")
    for i in range(4): a(f"ds_write_b128 v16, {vr(CACC+16+4*i,4)} offset:{1024*i}")
    a("s_waitcnt lgkmcnt(0)")
    a("L_ysent:")
    lds_set(14, FL_YKB)
    for i in range(4): a(f"ds_read_b64 {vr(48+2*i,2)}, v18 offset:{(3-i)*512}")
    a(f"s_and_b32 s60, s{DCH}, 1\ns_lshl_b32 s60, s60, 4\ns_lshr_b32 s72, s72, s60\ns_lshl_b32 s72, s72, 16")
    lds_wait(12, FL_YKB, 19)
    for i in range(4): a(f"ds_read_b128 {vr(32+4*i,4)}, v17 offset:{1024*i}")
    for i in range(4):
        u0, u1 = 48 + 2 * i, 49 + 2 * i
        c = CACC + 4 * i
        a(f"v_and_b32 v56, 0xffff0000, v{u1}\nv_lshlrev_b32 v57, 16, v{u1}\nv_and_b32 v58, 0xffff0000, v{u0}\nv_lshlrev_b32 v59, 16, v{u0}")
        for r in range(4): a(f"v_fma_f32 v{c+r}, v{56+r}, s72, v{c+r}")
    a(f"s_lshl_b32 s60, s{DCH}, 12\ns_lshl_b32 s61, s{DH}, 11\ns_add_u32 s60, s60, s61\ns_add_u32 s60, s60, {WS_YT}\nv_lshlrev_b32 v3, 4, v0")
    a("s_waitcnt lgkmcnt(0)")
    lds_set(14, FL_YFIN)
    for pr in range(2):
        d = 60 + 4 * pr
        for b in range(2):
            i = 2 * pr + b; c = CACC + 4 * i; p = 32 + 4 * i
            for r in range(4): a(f"v_add_f32 v{c+r}, v{c+r}, v{p+r}")
            a(f"v_cvt_pk_bf16_f32 v{d+2*b}, v{c}, v{c+1}\nv_cvt_pk_bf16_f32 v{d+2*b+1}, v{c+2}, v{c+3}")
        a(f"s_nop 1\nv_permlane16_swap_b32 v{d}, v{d+2}\nv_permlane16_swap_b32 v{d+1}, v{d+3}")
        a(f"buffer_store_dwordx4 {vr(d,4)}, v3, s[{S_WS}:{S_WS+3}], s60 offen offset:{1024*pr} sc1")
    stamp("ystored")
    a(f"s_lshr_b32 s60, s{DCH}, 4\ns_lshl1_add_u32 s60, s60, s{DH}\ns_lshl_b32 s60, s60, 7\ns_add_u32 s73, s60, {C_Y}")
    a(f"s_lshl2_add_u32 s60, s{S_DB2}, s{YW}\ns_lshr_b32 s61, s{S_TT2}, 4\ns_lshl1_add_u32 s60, s60, s61\ns_lshl_b32 s60, s60, 7\ns_add_u32 s74, s60, {C_Y}")
    a("v_and_b32 v3, 7, v0\nv_xor_b32 v3, v3, v2\nv_lshlrev_b32 v3, 4, v3\nv_lshrrev_b32 v19, 3, v0\nv_lshl_add_u32 v20, v19, 10, v3")
    a(f"s_lshl2_add_u32 s60, s{S_TT2}, s{YW}\ns_lshl_b32 s60, s60, 14\ns_lshl_b32 s61, s{S_DB2}, 7\ns_add_u32 s60, s60, s61\nv_add_u32 v20, s60, v20\nv_xor_b32 v21, 64, v20\nv_add_u32 v21, 8192, v21")
    a("v_and_b32 v3, 3, v0\nv_xor_b32 v3, v3, v2\nv_lshlrev_b32 v3, 4, v3\nv_lshl_add_u32 v22, v19, 12, v3\nv_bfe_u32 v3, v0, 2, 1\nv_lshl_add_u32 v22, v3, 9, v22")
    a(f"s_lshl2_add_u32 s60, s{S_DB2}, s{YW}\ns_lshl_b32 s60, s60, 16\ns_lshr_b32 s61, s{S_TT2}, 3\ns_lshl_b32 s61, s61, 10\ns_add_u32 s60, s60, s61")
    a(f"s_and_b32 s61, s{S_TT2}, 7\ns_lshl_b32 s61, s61, 6\ns_add_u32 s60, s60, s61\ns_add_u32 s60, s60, {WS_YT}\nv_add_u32 v22, s60, v22\nv_add_u32 v23, 32768, v22")
    lds_wait(15, FL_YFIN, 16)
    a("s_waitcnt vmcnt(0)")
    stamp("yflag")
    ssignal(73)
    a(f"s_lshl_b32 s63, s{YW}, 11\ns_add_u32 m0, s63, {L_XL}\ns_nop 0")
    a(f"buffer_load_dwordx4 v20, s[{S_Q}:{S_Q+3}], 0 offen lds")
    a("s_add_u32 m0, m0, 1024\ns_nop 0")
    a(f"buffer_load_dwordx4 v21, s[{S_Q}:{S_Q+3}], 0 offen lds")
    spoll(74, 16)
    stamp("yready")
    a(f"s_add_u32 m0, s63, {L_YL}\ns_nop 0")
    a(f"buffer_load_dwordx4 v22, s[{S_WS}:{S_WS+3}], 0 offen sc1 lds")
    a("s_add_u32 m0, m0, 1024\ns_nop 0")
    a(f"buffer_load_dwordx4 v23, s[{S_WS}:{S_WS+3}], 0 offen sc1 lds")
    a("s_waitcnt vmcnt(0)")
    stamp("ylanded")
    a("s_barrier")
    dump_stamps(1)
    a("s_endpgm")

    a("L_X:")
    role_now[0] = 0
    a(f"s_load_dwordx2 s[{S_K}:{S_K+1}], s[0:1], 8\ns_load_dwordx2 s[{S_V}:{S_V+1}], s[0:1], 16\ns_load_dwordx2 s[{S_SK}:{S_SK+1}], s[0:1], 24")
    srdw(a, S_K, 2097152); srdw(a, S_V, 2097152); srdw(a, S_SK, 4096)
    a(f"s_lshl2_add_u32 s60, s{S_J}, s3\ns_lshl_b32 s61, s60, 14\ns_lshl_b32 s62, s{S_XCD}, 7\ns_add_u32 s61, s61, s62")
    a("v_and_b32 v1, 31, v0\nv_lshrrev_b32 v2, 5, v0\nv_lshlrev_b32 v3, 13, v2\nv_lshl_add_u32 v3, v1, 2, v3\nv_add_u32 v4, s61, v3\nv_subrev_u32 v5, 3072, v4")
    a(f"s_lshl_b32 s62, s{S_XCD}, 9\nv_lshl_add_u32 v6, v1, 4, s62")
    a(f"s_lshl4_add_u32 s63, s{S_MI}, s{S_FI}\ns_lshl2_add_u32 s63, s63, s3\ns_lshl_b32 s64, s63, 11\nv_lshlrev_b32 v7, 10, v2\nv_lshl_add_u32 v7, v1, 4, v7\nv_add_u32 v7, s64, v7")
    a("s_movk_i32 s65, 4096")
    a("s_waitcnt lgkmcnt(0)")
    stamp("karg")
    for i in range(3): a(f"buffer_load_dword v{16+i}, v5, s[{S_K}:{S_K+3}], 0 offen offset:{1024*i}")
    for i in range(8): a(f"buffer_load_dword v{19+i}, v4, s[{S_K}:{S_K+3}], {'0' if i < 4 else 's65'} offen offset:{1024*(i%4)}")
    a(f"buffer_load_dwordx4 v[36:39], v6, s[{S_SK}:{S_SK+3}], 0 offen")
    for i in range(8): a(f"buffer_load_dword v{28+i}, v4, s[{S_V}:{S_V+3}], {'0' if i < 4 else 's65'} offen offset:{1024*(i%4)}")
    a(f"buffer_load_dwordx4 v[40:43], v7, s[{S_Q}:{S_Q+3}], 0 offen\nbuffer_load_dwordx4 v[44:47], v7, s[{S_Q}:{S_Q+3}], 0 offen offset:512")
    a(f"s_load_dwordx2 s[{S_WD}:{S_WD+1}], s[0:1], 72\ns_load_dwordx2 s[{S_OUT}:{S_OUT+1}], s[0:1], 80\ns_load_dwordx2 s[{S_DBG}:{S_DBG+1}], s[0:1], 88")
    srdw(a, S_WD, 1409024); srdw(a, S_OUT, 2097152); srdw(a, S_DBG, 256)
    ACC, XF, WF = 160, 16, 80
    for r in range(4): a(f"v_mov_b32 v{ACC+r}, 0")
    a("v_mov_b32 v13, 1")
    a(f"v_lshlrev_b32 v8, 2, v0\nv_add_u32 v8, {L_FLG}, v8\nds_write_b32 v8, v{ACC}")
    a("s_or_b32 s61, s2, s3\ns_cbranch_scc1 L_noclear")
    a("v_lshlrev_b32 v8, 7, v0\ns_movk_i32 s61, 8192\ns_movk_i32 s62, 16384")
    for so in ("0", "s61", "s62"): a(f"buffer_store_dword v{ACC}, v8, s[{S_WS}:{S_WS+3}], {so} offen sc1")
    a(f"s_waitcnt vmcnt(0) lgkmcnt(0)\ns_atomic_add s59, s[{S_DBG}:{S_DBG+1}], 0")
    a("L_noclear:")
    for r in range(4, 96): a(f"v_mov_b32 v{ACC+r}, 0")
    a(f"s_lshl_b32 s61, s3, 1\ns_sub_u32 s61, 7, s61\nv_sub_u32 v8, s61, v2\nv_xor_b32 v8, v8, v1\nv_and_b32 v8, 7, v8\nv_lshlrev_b32 v8, 4, v8\nv_lshl_add_u32 v8, v1, 7, v8\nv_add_u32 v8, {L_KVS}, v8")
    a(f"s_lshl_b32 s64, s63, 4\ns_add_u32 s64, s64, {WS_STATS}\nv_lshlrev_b32 v9, 3, v2")
    a("s_waitcnt vmcnt(10)")
    stamp("kvland")
    KF, TW, VF, KS = 48, 72, 80, 96
    for i in range(11): a(f"v_lshlrev_b32 v{KF+2*i}, 16, v{16+i}\nv_and_b32 v{KF+2*i+1}, 0xffff0000, v{16+i}")
    for c in range(2):
        for hh in range(2):
            a(f"v_lshlrev_b32 v{TW+4*hh+c}, 16, v{36+2*c+hh}\nv_and_b32 v{TW+4*hh+2+c}, 0xffff0000, v{36+2*c+hh}")
    for i in range(8):
        a(f"v_pk_mul_f32 {vr(KS+2*i,2)}, {vr(KF+2*i,2)}, {vr(TW+6,2)}")
    for jt in (2, 1, 0):
        for i in range(8):
            a(f"v_pk_fma_f32 {vr(KS+2*i,2)}, {vr(KF+2*(i+3-jt),2)}, {vr(TW+2*jt,2)}, {vr(KS+2*i,2)}")
    a("s_waitcnt vmcnt(2)")
    for i in range(8): a(f"v_lshlrev_b32 v{VF+2*i}, 16, v{28+i}\nv_and_b32 v{VF+2*i+1}, 0xffff0000, v{28+i}")
    for i in range(8): a(f"v_pk_mul_f32 {vr(KS+2*i,2)}, {vr(KS+2*i,2)}, {vr(VF+2*i,2)}")
    for c in range(2):
        for m in range(4):
            a(f"v_cvt_pk_bf16_f32 v{16+4*c+m}, v{KS+2*(7-2*m)+c}, v{KS+2*(6-2*m)+c}")
        a(f"ds_write_b128 v8, {vr(16+4*c,4)} offset:{4096*c}")
    stamp("kvstored")
    a("s_waitcnt vmcnt(0)")
    SF = 48
    for i in range(8): a(f"v_lshlrev_b32 v{SF+2*i}, 16, v{40+i}\nv_and_b32 v{SF+2*i+1}, 0xffff0000, v{40+i}")
    def reduce32(src):
        a(f"v_add_f32 v{src}, v{src}, v{src+1}\ns_nop 1")
        for ctl in ("row_ror:8", "row_ror:4", "row_ror:2", "row_ror:1"):
            a(f"v_add_f32_dpp v{src}, v{src}, v{src} {ctl} row_mask:0xf bank_mask:0xf\ns_nop 1")
        a(f"v_mov_b32 v{src+1}, v{src}\ns_nop 1\nv_permlane16_swap_b32 v{src}, v{src+1}\nv_add_f32 v{src}, v{src}, v{src+1}")
    for i in range(4): a(f"v_pk_add_f32 {vr(64+2*i,2)}, {vr(SF+2*i,2)}, {vr(SF+8+2*i,2)}")
    a("v_pk_add_f32 v[64:65], v[64:65], v[68:69]\nv_pk_add_f32 v[66:67], v[66:67], v[70:71]\nv_pk_add_f32 v[64:65], v[64:65], v[66:67]")
    reduce32(64)
    a("v_mul_f32 v64, 0x3b000000, v64")
    for i in range(8): a(f"v_pk_add_f32 {vr(SF+2*i,2)}, {vr(SF+2*i,2)}, v[64:65] op_sel_hi:[1,0] neg_lo:[0,1] neg_hi:[0,1]")
    a(f"v_pk_mul_f32 v[66:67], {vr(SF,2)}, {vr(SF,2)}\nv_pk_mul_f32 v[68:69], {vr(SF+2,2)}, {vr(SF+2,2)}")
    for i in range(2, 8): a(f"v_pk_fma_f32 {vr(66+2*(i&1),2)}, {vr(SF+2*i,2)}, {vr(SF+2*i,2)}, {vr(66+2*(i&1),2)}")
    a("v_pk_add_f32 v[66:67], v[66:67], v[68:69]")
    reduce32(66)
    a("v_mul_f32 v66, 0x3b000000, v66")
    a("v_cvt_pk_bf16_f32 v66, v64, v66\nv_lshlrev_b32 v64, 16, v66\nv_and_b32 v66, 0xffff0000, v66\nv_add_f32 v66, 0x3727c5ac, v66")
    a("v_cvt_pk_bf16_f32 v66, v66, v66\nv_and_b32 v66, 0xffff0000, v66\nv_sqrt_f32 v66, v66\ns_nop 0")
    a("v_cvt_pk_bf16_f32 v66, v66, v66\nv_and_b32 v66, 0xffff0000, v66\nv_rcp_f32 v65, v66")
    a("s_mov_b32 exec_lo, 1\ns_mov_b32 exec_hi, 1")
    a(f"buffer_store_dwordx2 v[64:65], v9, s[{S_WS}:{S_WS+3}], s64 offen sc1")
    a("s_mov_b64 exec, -1")
    TWs, CWs, C3 = 62, 63, 64
    a(f"s_and_b32 s{TWs}, s3, 1\ns_lshr_b32 s{CWs}, s3, 1\ns_mul_i32 s{C3}, s{CWs}, 3")
    a("v_and_b32 v1, 15, v0\nv_lshrrev_b32 v2, 4, v0")
    a("v_lshrrev_b32 v3, 1, v1\nv_xor_b32 v3, v3, v2\nv_lshlrev_b32 v3, 4, v3\nv_lshl_add_u32 v3, v1, 7, v3")
    a(f"s_lshl_b32 s60, s{TWs}, 13\nv_add_u32 v4, s60, v3\nv_xor_b32 v5, 64, v4")
    a("v_lshrrev_b32 v3, 2, v1\nv_lshl_add_u32 v3, v2, 3, v3\nv_mul_u32_u24 v3, 192, v3\nv_and_b32 v6, 3, v1\nv_lshl_add_u32 v3, v6, 3, v3")
    a(f"v_add_u32 v3, {GOFF}, v3\nv_and_b32 v6, 1, v2\ns_add_u32 s60, s{C3}, 1")
    a(f"v_xor_b32 v7, s60, v6\nv_xor_b32 v6, s{C3}, v6\nv_lshl_add_u32 v6, v6, 5, v3\nv_lshl_add_u32 v7, v7, 5, v3")
    for q in range(4): a(f"v_mov_b32 v{8+q}, v{4+q}")
    a(f"s_mov_b32 s65, {STAGE}\ns_mov_b32 s66, 4")
    a("s_setprio 1")
    a("s_waitcnt lgkmcnt(0)")
    stamp("p0done")
    a("s_barrier")
    stamp("Bstart")
    t = LgkmTracker(a)
    def xread(st, i, ks):
        r = XF + 32 * st + 8 * i + 4 * ks
        t.issue(f"ds_read_b128 {vr(r,4)}, v{8+ks} offset:{2048*i}", ("x", st, i, ks))
    def wread(j, ks, h):
        jj, gu = j >> 1, j & 1
        r = WF + 8 * (j % 3) + 4 * ks + 2 * h
        off = gu * (UOFF - GOFF) + ks * 6144 + h * 768 + (64 if jj == 2 else 0)
        t.issue(f"ds_read_b64_tr_b16 {vr(r,2)}, v{11 if jj == 1 else 10} offset:{off}", ("w", j % 3, ks, h))
    def first_reads(st):
        out = [lambda: wread(0, 0, 0), lambda: wread(0, 0, 1), lambda: xread(st, 0, 0), lambda: wread(0, 1, 0), lambda: wread(0, 1, 1), lambda: xread(st, 0, 1)]
        for i in range(1, 4):
            for ks in range(2): out.append(lambda i=i, ks=ks: xread(st, i, ks))
        return out
    for f in first_reads(0): f()
    entry_q = list(t.q)
    a(".p2align 3\nL_xloop:")
    BAR = 34
    for st in range(2):
        fill = {}
        def put(slot, f): fill.setdefault(slot, []).append(f)
        for j, base in ((1, 0), (2, 4), (3, 8), (4, 16), (5, 24)):
            k = 0
            for ks in range(2):
                for h in range(2):
                    put(base + k, (lambda j=j, ks=ks, h=h: wread(j, ks, h))); k += 1
        for k, f in enumerate(first_reads(1 - st)): put(BAR + 1 + k, f)
        for q in range(4): put(28 + q, lambda q=q: a(f"v_add_u32 v{8+q}, s65, v{4+q}"))
        put(32, lambda: a(f"s_add_u32 s65, s65, {STAGE}\ns_cmp_eq_u32 s65, {3*STAGE}"))
        put(33, lambda: a("s_cselect_b32 s65, 0, s65"))
        if st == 1:
            put(13, lambda: a("s_sub_u32 s66, s66, 1"))
            put(34, lambda: a("s_cmp_lg_u32 s66, 0"))
        m = 0
        for j in range(6):
            for i in range(4):
                for ks in range(2):
                    t.need({("w", j % 3, ks, 0), ("w", j % 3, ks, 1), ("x", st, i, ks)})
                    c = ACC + 16 * j + 4 * i
                    a(f"v_mfma_f32_16x16x32_bf16 {vr(c,4)}, {vr(WF + 8*(j%3) + 4*ks, 4)}, {vr(XF + 32*st + 8*i + 4*ks, 4)}, {vr(c,4)}")
                    for f in fill.get(m, []): f()
                    if m == BAR:
                        t.q = []
                        a("s_waitcnt vmcnt(0) lgkmcnt(0)")
                        if st == 1: a("s_cbranch_scc0 L_xnobar")
                        a("s_barrier")
                        if st == 1: a("L_xnobar:")
                    m += 1
    assert t.q == entry_q
    a("s_cbranch_scc1 L_xloop")
    a(f"s_lshl2_add_u32 s60, s3, {L_FLG}\nv_mov_b32 v14, s60\ns_xor_b32 s60, s60, 4\nv_mov_b32 v12, s60\nv_and_b32 v15, 3, v0\nv_lshlrev_b32 v15, 2, v15\nv_add_u32 v15, {L_FLG}, v15")
    CSR, MUR = 104, 128
    a(f"s_lshl_b32 s60, s{C3}, 6\ns_add_u32 s60, s60, {L_CS}\nv_lshl_add_u32 v8, v2, 4, s60")
    a(f"s_lshl_b32 s60, s{TWs}, 8\ns_add_u32 s60, s60, {L_MU}\nv_lshl_add_u32 v9, v1, 2, s60")
    a("s_waitcnt lgkmcnt(0)")
    stamp("G1end")
    lds_set(14, FL_XDONE)
    for i in range(4): a(f"ds_read_b32 v{MUR+i}, v9 offset:{64*i}")
    for jj in range(3):
        for gu in range(2): a(f"ds_read_b128 {vr(CSR+8*jj+4*gu,4)}, v8 offset:{384*gu+64*jj}")
    a("v_and_b32 v3, 1, v2\nv_mul_u32_u24 v3, 44032, v3\nv_lshrrev_b32 v10, 1, v2\nv_lshl_add_u32 v3, v10, 8, v3\nv_lshl_add_u32 v3, v1, 4, v3")
    a(f"s_lshl1_add_u32 s67, s{S_MI}, s{TWs}\ns_mul_i32 s60, s67, 176128\ns_mul_i32 s68, s{S_FI}, 6\ns_add_u32 s68, s68, s{C3}")
    a(f"s_lshl_b32 s61, s68, 9\ns_add_u32 s60, s60, s61\ns_add_u32 s60, s60, {WS_H}\ns_add_u32 s61, s60, 88064")
    for jj in range(3):
        a(f"s_cmp_ge_u32 s68, {86 - jj}\ns_cbranch_scc1 L_xstored")
        a(f"s_waitcnt lgkmcnt({4 - 2*jj})")
        for ip in range(2):
            d = 16 + 8 * jj + 4 * ip
            for b in range(2):
                i = 2 * ip + b
                g = ACC + 32 * jj + 4 * i; u = g + 16
                mu = f"{vr(MUR + 2*ip, 2)}"
                sel = f"op_sel:[{b},0,0] op_sel_hi:[{b},1,1] neg_lo:[1,0,0] neg_hi:[1,0,0]"
                for hh in range(2):
                    a(f"v_pk_fma_f32 {vr(g+2*hh,2)}, {mu}, {vr(CSR+8*jj+2*hh,2)}, {vr(g+2*hh,2)} {sel}")
                    a(f"v_pk_fma_f32 {vr(u+2*hh,2)}, {mu}, {vr(CSR+8*jj+4+2*hh,2)}, {vr(u+2*hh,2)} {sel}")
                a(f"v_pk_mul_f32 {vr(g,2)}, {vr(g,2)}, {vr(u,2)}\nv_pk_mul_f32 {vr(g+2,2)}, {vr(g+2,2)}, {vr(u+2,2)}")
                a(f"v_cvt_pk_bf16_f32 v{d+2*b}, v{g}, v{g+1}\nv_cvt_pk_bf16_f32 v{d+2*b+1}, v{g+2}, v{g+3}")
            a(f"s_nop 1\nv_permlane16_swap_b32 v{d}, v{d+2}\nv_permlane16_swap_b32 v{d+1}, v{d+3}")
            a(f"buffer_store_dwordx4 {vr(d,4)}, v3, s[{S_WS}:{S_WS+3}], s{60 if ip == 0 else 61} offen offset:{512*jj} sc1")
    a("L_xstored:")
    lds_set(14, FL_XEPI)
    a("s_setprio 0")
    stamp("hstored")
    TH, KH = TWs, CWs
    a(f"s_lshl_b32 s65, s67, 8\ns_add_u32 s65, s65, {C_H}\ns_lshl1_add_u32 s66, s{S_FI}, s{CWs}")
    a("v_and_b32 v3, 1, v2\nv_lshlrev_b32 v3, 1, v3\nv_and_b32 v8, 7, v0\nv_xor_b32 v8, v8, v3\nv_lshlrev_b32 v8, 4, v8\nv_lshrrev_b32 v3, 3, v0\nv_lshl_add_u32 v8, v3, 10, v8")
    a(f"s_lshl_b32 s60, s{TH}, 14\ns_lshl_b32 s61, s{S_DB2}, 7\ns_add_u32 s60, s60, s61\nv_add_u32 v8, s60, v8\nv_xor_b32 v9, 64, v8\nv_add_u32 v9, 8192, v9")
    a("v_lshrrev_b32 v3, 2, v1\nv_lshl_add_u32 v3, v2, 3, v3\nv_lshlrev_b32 v4, 7, v3\nv_and_b32 v3, 3, v1\nv_lshl_add_u32 v4, v3, 3, v4")
    a("v_and_b32 v3, 1, v2\nv_lshlrev_b32 v3, 1, v3\nv_lshrrev_b32 v5, 3, v1\nv_or_b32 v3, v3, v5\nv_lshl_add_u32 v4, v3, 5, v4")
    a(f"s_mul_i32 s69, s{KH}, 20480\ns_add_u32 s60, s69, {2*STAGE}\nv_add_u32 v4, s60, v4")
    a("v_xor_b32 v5, 32, v4\nv_xor_b32 v6, 64, v4\nv_xor_b32 v7, 96, v4")
    NS, S0, R0 = 70, 71, 72
    a(f"s_sub_u32 s{NS}, 22, s{KH}\ns_mul_i32 s{S0}, s{KH}, 22\ns_sub_u32 s60, s{S_R2}, s{NS}\ns_cselect_b32 s{R0}, s{S_R2}, s60")
    lds_wait(15, FL_XDONE, 40)
    a("s_waitcnt vmcnt(0)")
    stamp("hflag")
    a("s_cmp_gt_u32 s66, 14\ns_cbranch_scc1 L_xsig1")
    ssignal(65)
    a("L_xsig1:\ns_sub_u32 s66, s66, 14\ns_cmp_gt_u32 s66, 14\ns_cbranch_scc1 L_xsig2\ns_add_u32 s65, s65, 128")
    ssignal(65)
    a("L_xsig2:")
    a(f"s_lshl1_add_u32 s65, s{S_TT2}, s{KH}\ns_lshl_b32 s65, s65, 7\ns_add_u32 s65, s65, {C_H}")
    def step_adv(reg, k):
        a(f"s_add_u32 s{reg}, s{reg}, {k}\ns_sub_u32 s60, s{reg}, s{NS}\ns_cselect_b32 s{reg}, s{reg}, s60")
    def wd_dma(ldsbase_s, ldsoff):
        a(f"s_add_u32 s61, s73, s{S0}\ns_lshl_b32 s61, s61, 15\ns_add_u32 m0, s{ldsbase_s}, {ldsoff}\ns_nop 0")
        a(f"buffer_load_dwordx4 v8, s[{S_WD}:{S_WD+3}], s61 offen lds")
        a("s_add_u32 m0, m0, 1024\ns_nop 0")
        a(f"buffer_load_dwordx4 v9, s[{S_WD}:{S_WD+3}], s61 offen lds")
    a(f"s_lshl_b32 s60, s{TH}, 11\ns_add_u32 s74, s69, s60\ns_lshl_b32 s61, s{KH}, 12\ns_add_u32 s75, s60, s61\ns_mov_b32 s68, s60\ns_mov_b32 s73, s{R0}")
    step_adv(73, 6)
    for i in range(6, 16):
        wd_dma(74, ((i - 6) // 5) * STAGE + ((i - 6) % 5) * 4096)
        step_adv(73, 1)
    a(f"s_cmp_lg_u32 s{KH}, 0\ns_cbranch_scc1 L_xno21\ns_mov_b32 s67, s73")
    step_adv(73, 5)
    wd_dma(68, L_E + 8192)
    a("s_mov_b32 s73, s67\nL_xno21:")
    stamp("wdissued")
    lds_wait(15, FL_YB0, 16)
    stamp("b0seen")
    PH, DB, HF, A2 = 144, 112, 16, 224
    def wdread(dst, dt, h, off, tag):
        t.issue(f"ds_read_b64_tr_b16 {vr(dst + 4*dt + 2*h, 2)}, v{4+dt} offset:{off + 512*h}", tag)
    t = LgkmTracker(a)
    for i in range(5):
        for dt in range(4):
            for h in range(2): wdread(PH + 16 * i, dt, h, 4096 * i, ("p",))
    t.drain()
    lds_set(14, FL_XPRE)
    lds_wait(12, FL_XPRE, 16)
    for i in range(16, 21):
        wd_dma(74, 2 * STAGE + (i - 16) * 4096)
        if i < 20: step_adv(73, 1)
    a(f"s_lshl1_add_u32 s60, s{S_TT2}, s{TH}\ns_mul_i32 s61, s60, 88064\ns_lshl_b32 s67, s{S0}, 10\ns_add_u32 s61, s61, s67\ns_add_u32 s61, s61, {WS_H}")
    a("v_lshl_add_u32 v8, v0, 4, s61\nv_add_u32 v9, 44032, v8")
    a(f"s_lshl1_add_u32 s75, s60, s{KH}\ns_lshl_b32 s61, s75, 7\ns_add_u32 s61, s61, {WS_STATS}\nv_lshl_add_u32 v10, v1, 3, s61")
    stamp("prepoll")
    spoll(65, 15)
    stamp("hready")
    a(f"s_mov_b32 s73, s{R0}")
    def hreg(i): return HF + 8 * i if i < 12 else PH + 8 * (i - 12)
    vq = []
    def hload(i):
        if i == 21:
            a(f"s_lshl_b32 s61, s73, 10\ns_cmp_lg_u32 s{KH}, 0\ns_cselect_b32 s61, 0x40000000, s61")
        else:
            a("s_lshl_b32 s61, s73, 10")
        a(f"buffer_load_dwordx4 {vr(hreg(i),4)}, v8, s[{S_WS}:{S_WS+3}], s61 offen sc1")
        a(f"buffer_load_dwordx4 {vr(hreg(i)+4,4)}, v9, s[{S_WS}:{S_WS+3}], s61 offen sc1")
        vq.extend([(i, 0), (i, 1)])
        if i < 21: step_adv(73, 1)
    def vneed(tag):
        if tag in vq:
            k = vq.index(tag)
            n = len(vq) - 1 - k
            a(f"s_waitcnt vmcnt({n})")
            del vq[:k + 1]
    a(f"buffer_load_dwordx2 v[10:11], v10, s[{S_WS}:{S_WS+3}], 0 offen sc1")
    for i in range(12): hload(i)
    stamp("hissued")
    a("s_waitcnt vmcnt(25)")
    lds_set(14, FL_XDMA)
    t = LgkmTracker(a)
    def slot(i):
        if i == 5: return ("E", 0)
        if i < 16: return ("R01", ((i - 6) // 5) * STAGE + ((i - 6) % 5) * 4096)
        if i < 21: return ("R2", (i - 16) * 4096)
        return ("E2", 0)
    region = ["R2a"]
    t.q.append(("flag",))
    a(f"s_lshl_b32 s60, s{KH}, 14\ns_sub_u32 s67, {L_E}, s60")
    a(f"s_sub_u32 s68, s67, {2*STAGE}")
    a(f"s_sub_u32 s69, {L_E + 8192 - 2*STAGE}, s69")
    def step_reads(i):
        reg, off = slot(i)
        out = []
        if reg != region[0]:
            op = {"E": "v_add_u32 v{r}, s68, v{r}", "R01": "v_subrev_u32 v{r}, s67, v{r}", "R2": "v_add_u32 v{r}, " + str(2*STAGE) + ", v{r}", "E2": "v_add_u32 v{r}, s69, v{r}"}[reg]
            region[0] = reg
            pre = [op.format(r=4 + q) for q in range(4)]
        else:
            pre = [None] * 4
        for dt in range(4):
            for h in range(2):
                def f(dt=dt, h=h):
                    if h == 0 and pre[dt]: a(pre[dt])
                    wdread(DB + 16 * (i & 1), dt, h, off, ("d", i & 1, dt, h))
                out.append(f)
        return out
    a("s_setprio 1")
    for i in range(22):
        nxt = step_reads(i + 1) if 5 <= i + 1 < 22 else []
        for ts in range(2):
            for dt in range(4):
                if dt == 0: vneed((i, ts))
                if i >= 5: t.need({("d", i & 1, dt, 0), ("d", i & 1, dt, 1)})
                A = (PH + 16 * i if i < 5 else DB + 16 * (i & 1)) + 4 * dt
                c = A2 + 16 * ts + 4 * dt
                a(f"v_mfma_f32_16x16x32_bf16 {vr(c,4)}, {vr(A,4)}, {vr(hreg(i)+4*ts,4)}, {'0' if i == 0 else vr(c,4)}")
                if nxt: nxt.pop(0)()
        if i < 5:
            hload(12 + 2 * i); hload(13 + 2 * i)
        if i == 3:
            lds_wait(15, FL_XDMA, 3); t.q = []
        if i == 11:
            lds_set(14, FL_XMID); t.q.append(("flag",))
    a("s_setprio 0")
    stamp("G2end")
    a(f"s_lshl_b32 s60, s3, 12\ns_add_u32 s60, s60, {L_RED}\nv_lshl_add_u32 v4, v0, 4, s60\nv_xor_b32 v5, 8192, v4")
    a("v_lshrrev_b32 v3, 2, v1\nv_lshl_add_u32 v3, v2, 2, v3\nv_bfe_u32 v6, v3, 1, 2\ns_and_b32 s61, s75, 3\nv_xor_b32 v6, s61, v6\nv_lshlrev_b32 v6, 4, v6\nv_lshl_add_u32 v6, v3, 7, v6")
    a(f"v_bfe_u32 v3, v1, 1, 1\nv_lshl_add_u32 v6, v3, 6, v6\nv_and_b32 v3, 1, v1\nv_lshl_add_u32 v6, v3, 3, v6\nv_add_u32 v6, {L_YL}, v6")
    a("v_lshrrev_b32 v3, 1, v2\nv_lshrrev_b32 v7, 1, v1\nv_xor_b32 v7, v7, v3\nv_lshlrev_b32 v7, 4, v7\nv_lshl_add_u32 v7, v1, 7, v7\nv_and_b32 v3, 1, v2\nv_lshl_add_u32 v7, v3, 3, v7")
    a(f"s_lshl_b32 s61, s61, 11\ns_add_u32 s61, s61, {L_XL}\nv_add_u32 v7, s61, v7\nv_xor_b32 v8, 32, v7\nv_xor_b32 v9, 64, v7\nv_xor_b32 v12, 96, v7")
    lds_wait(15, FL_XMID, 3)
    a(f"s_cmp_eq_u32 s{KH}, 0\ns_cbranch_scc1 L_xsend0")
    for i in range(4): a(f"ds_write_b128 v4, {vr(A2+4*i,4)} offset:{1024*i}")
    a("s_waitcnt lgkmcnt(0)")
    for i in range(16): a(f"v_mov_b32 v{A2+i}, v{A2+16+i}")
    a("s_branch L_xsent")
    a("L_xsend0:")
    for i in range(4): a(f"ds_write_b128 v4, {vr(A2+16+4*i,4)} offset:{1024*i}")
    a("s_waitcnt lgkmcnt(0)")
    a("L_xsent:")
    a("s_barrier")
    stamp("Z1")
    xaddr = [7, 8, 9, 12]
    for dt in range(4):
        a(f"ds_read_b128 {vr(16+4*dt,4)}, v5 offset:{1024*dt}")
        a(f"ds_read_b64 {vr(32+2*dt,2)}, v{xaddr[dt]}")
        a(f"ds_read_b64_tr_b16 {vr(40+2*dt,2)}, v6 offset:{2048*dt}")
    a(f"s_lshl_b32 s60, s75, 14\ns_lshl_b32 s61, s{S_DB2}, 7\ns_add_u32 s60, s60, s61")
    a("v_and_b32 v3, 1, v2\nv_lshlrev_b32 v3, 5, v3\nv_lshl_add_u32 v3, v1, 10, v3\nv_lshrrev_b32 v4, 1, v2\nv_lshl_add_u32 v3, v4, 4, v3")
    a("v_mul_f32 v15, v11, v11\nv_mul_f32 v14, v15, v11\nv_mul_f32 v15, 0xbfb8aa3b, v15")
    for dt in range(4):
        a(f"s_waitcnt lgkmcnt({9 - 3*dt})")
        o = A2 + 4 * dt; X = 48; Yv = 52; E = 56
        a(f"v_pk_add_f32 {vr(o,2)}, {vr(o,2)}, {vr(16+4*dt,2)}\nv_pk_add_f32 {vr(o+2,2)}, {vr(o+2,2)}, {vr(18+4*dt,2)}")
        for hh in range(2):
            a(f"v_lshlrev_b32 v{X+2*hh}, 16, v{32+2*dt+hh}\nv_and_b32 v{X+2*hh+1}, 0xffff0000, v{32+2*dt+hh}")
            a(f"v_lshlrev_b32 v{Yv+2*hh}, 16, v{40+2*dt+hh}\nv_and_b32 v{Yv+2*hh+1}, 0xffff0000, v{40+2*dt+hh}")
        for hh in range(2):
            a(f"v_pk_mul_f32 {vr(E+2*hh,2)}, {vr(o+2*hh,2)}, v[14:15] op_sel:[0,1] op_sel_hi:[1,1]")
        for r in range(4): a(f"v_exp_f32 v{E+r}, v{E+r}")
        for hh in range(2):
            a(f"v_pk_mul_f32 {vr(Yv+2*hh,2)}, {vr(Yv+2*hh,2)}, v[14:15] op_sel_hi:[1,0]")
            a(f"v_pk_add_f32 {vr(60+2*hh,2)}, {vr(X+2*hh,2)}, v[10:11] op_sel_hi:[1,0] neg_lo:[0,1] neg_hi:[0,1]")
        for hh in range(2):
            a(f"v_pk_add_f32 {vr(E+2*hh,2)}, {vr(E+2*hh,2)}, 1.0 op_sel_hi:[1,0]")
        for r in range(4): a(f"v_rcp_f32 v{E+r}, v{E+r}")
        for hh in range(2):
            a(f"v_pk_mul_f32 {vr(Yv+2*hh,2)}, {vr(Yv+2*hh,2)}, {vr(60+2*hh,2)}")
            a(f"v_pk_mul_f32 {vr(o+2*hh,2)}, {vr(o+2*hh,2)}, {vr(E+2*hh,2)}")
        for hh in range(2):
            a(f"v_pk_fma_f32 {vr(o+2*hh,2)}, {vr(o+2*hh,2)}, {vr(Yv+2*hh,2)}, {vr(X+2*hh,2)}")
        d = 64 + 2 * dt
        a(f"v_cvt_pk_bf16_f32 v{d}, v{o}, v{o+1}\nv_cvt_pk_bf16_f32 v{d+1}, v{o+2}, v{o+3}")
        if dt & 1:
            d = 64 + 2 * (dt - 1)
            a(f"s_nop 1\nv_permlane16_swap_b32 v{d}, v{d+2}\nv_permlane16_swap_b32 v{d+1}, v{d+3}")
            a(f"buffer_store_dwordx4 {vr(d,4)}, v3, s[{S_OUT}:{S_OUT+3}], s60 offen offset:{32*(dt-1)}")
    if prof:
        a("s_waitcnt vmcnt(0)")
        stamp("end")
        dump_stamps(0)
    a("L_end:")
    return a.text()


def full_text(opt=None):
    ref = open(f"cdna_kernels/{NAME}.s.ref").read().split("\n")
    head = [l for l in ref if l.startswith(";") and "@launch" not in l and not l.startswith("; Override") and not l.startswith("; grid=")]
    out = "\n".join(head) + "\n"
    out += f"; @launch grid=(256,1,1) block=(512,1,1) lds={LDS_BYTES}\n"
    out += f""".amdgcn_target "amdgcn-amd-amdhsa--gfx950"
.text
.globl {NAME}_kernel
.p2align 8
.type {NAME}_kernel,@function
{NAME}_kernel:
"""
    out += gen(opt)
    out += f"""    s_endpgm
.section .rodata,"a"
.p2align 6
.amdhsa_kernel {NAME}_kernel
  .amdhsa_next_free_vgpr 256
  .amdhsa_next_free_sgpr 102
  .amdhsa_accum_offset 256
  .amdhsa_group_segment_fixed_size 0
  .amdhsa_kernarg_size 104
  .amdhsa_user_sgpr_count 2
  .amdhsa_user_sgpr_kernarg_segment_ptr 1
  .amdhsa_system_sgpr_workgroup_id_x 1
.end_amdhsa_kernel
"""
    return out


if __name__ == "__main__":
    import hazard, json
    opt = json.loads(sys.argv[2]) if len(sys.argv) > 2 else {}
    txt = full_text(opt)
    bad = hazard.check(txt)
    for b in bad: print("HAZARD", b)
    path = sys.argv[1] if len(sys.argv) > 1 else f"cdna_kernels/{NAME}.s"
    open(path, "w").write(txt)
    print("wrote", path, len(txt), "bytes")
```

```python
class Asm:
    def __init__(self):
        self.L = []
        self.uid = 0
    def __call__(self, s):
        for line in s.split("\n"):
            line = line.strip()
            if line: self.L.append(line)
    def label(self, base):
        self.uid += 1
        return f"L_{base}_{self.uid}"
    def text(self):
        out = []
        for l in self.L:
            out.append(l if l.endswith(":") or l.startswith(".") or l.startswith(";") else "    " + l)
        return "\n".join(out) + "\n"

def vr(a, n=1):
    return f"v{a}" if n == 1 else f"v[{a}:{a+n-1}]"
def sr(a, n=1):
    return f"s{a}" if n == 1 else f"s[{a}:{a+n-1}]"

class LgkmTracker:
    def __init__(self, a, pending=None):
        self.a = a
        self.q = list(pending or [])
    def issue(self, text, tag):
        self.a(text)
        self.q.append(tag)
    def need(self, tags):
        idx = -1
        for i, t in enumerate(self.q):
            if t in tags: idx = i
        if idx < 0: return
        n = len(self.q) - 1 - idx
        n = min(n, 15)
        self.a(f"s_waitcnt lgkmcnt({n})")
        self.q = self.q[len(self.q) - n:] if n else []
    def drain(self):
        if self.q:
            self.a("s_waitcnt lgkmcnt(0)")
            self.q = []

class VmTracker:
    def __init__(self, a):
        self.a = a
        self.q = []
    def issue(self, text, tag):
        self.a(text)
        self.q.append(tag)
    def count(self, tags):
        if not isinstance(tags, (set, list, tuple)) or (isinstance(tags, tuple) and tags in self.q): tags = {tags}
        idx = -1
        for i, t in enumerate(self.q):
            if t in tags: idx = i
        if idx < 0: return None
        n = len(self.q) - 1 - idx
        assert n <= 63
        self.q = self.q[idx + 1:]
        return n
    def need(self, tags, extra=""):
        n = self.count(tags)
        if n is None:
            if extra: self.a(f"s_waitcnt {extra}")
            return
        self.a(f"s_waitcnt vmcnt({n}) {extra}".strip())
    def drain(self, extra=""):
        self.q = []
        self.a(f"s_waitcnt vmcnt(0) {extra}".strip())
```

```python
import sys
sys.path.insert(0, "work")
from asmlib import *

NAME = "recurrent_scan__ssm_conv_h3__glu_gated_bilinear__prompt"

C_X, C_ST, C_H, C_Y, C_CS = 0, 1024, 3072, 11264, 19456
WS_CSP = 0x8000
WS_STATS = 0x38000
WS_PROF = 0x40000
WS_KVT = 0x100000
WS_YT = 0x300000
WS_H = 0x500000
WS_SIZE = 0xB00000
STAGE = 40960
GOFF, UOFF = 16384, 28672
L_KC = 122880
L_U = 139520
USTR = 4608
L_CS = 148736
L_MU = 149504
L_FLG = 150016
L_E = 150528
L_KVS = L_E
L_ST2 = 162816
L_YL = L_KC
L_XL = L_KC + 8192
L_RED = 0
LDS_BYTES = 163840
(FL_XDONE, FL_XPRE, FL_XDMA, FL_YRDY, FL_YB0, FL_YKA, FL_YKB, FL_YFIN,
 FL_XEPI, FL_XMID, FL_YC7, FL_YCS, FL_YXL, FL_XHI, FL_XS0, FL_YFL, FL_XA) = range(0, 272, 16)
S_Q, S_K, S_V, S_SK, S_SM, S_WG, S_WU, S_WD, S_OUT, S_DBG, S_WS, S_SD = 4, 8, 12, 16, 20, 24, 28, 32, 36, 40, 44, 48
S_XCD, S_J, S_MI, S_FI, S_ROT, S_TT2, S_DB2, S_R2 = 50, 51, 52, 53, 54, 55, 56, 57
SPIN_MAX = 200000
STAMP_NAMES = None


def srdw(a, r, size):
    a(f"s_mov_b32 s{r+2}, {size}\ns_mov_b32 s{r+3}, 0x20000")


def srd(r):
    return f"s[{r}:{r+3}]"


def gen(opt=None):
    opt = opt or {}
    prof = opt.get("prof", 0)
    a = Asm()
    PLACE = opt.get("place", "YYYYXXX")
    ALLS = all(ch == "S" for ch in PLACE[1:6])
    YA = opt.get("ya", 1 if ALLS else 0)
    names = {0: [], 1: []}
    role_now = [1]
    skip = set(opt.get("nostamp", []))
    only = opt.get("stamps")

    def stamp(name):
        if prof and name not in skip and (only is None or name in only or name == "end"):
            k = len(names[role_now[0]]) + 1
            assert k < 24
            names[role_now[0]].append(name)
            a(f"s_memrealtime s[76:77]\ns_waitcnt lgkmcnt(0)\ns_mov_b32 s{78+k}, s76")
    global STAMP_NAMES
    STAMP_NAMES = names

    def dump_stamps(role):
        if not prof: return
        amp = opt.get("amp")
        if amp:
            if amp[0] == role:
                k = names[role].index(amp[1]) + 1
                lab = a.label("amp"); out = a.label("ampo")
                a(f"s_and_b32 s60, s3, 3\ns_cmp_lg_u32 s60, 0\ns_cbranch_scc1 {out}\ns_cmp_lg_u32 s2, {amp[3]}\ns_cbranch_scc1 {out}")
                a(f"s_sub_u32 s60, s{78+k}, s78\ns_min_u32 s60, s60, 10000\ns_mul_i32 s60, s60, {amp[2]}\ns_add_u32 s60, s60, {amp[4] if len(amp) > 4 else 0}")
                a(f"{lab}:\ns_memrealtime s[76:77]\ns_waitcnt lgkmcnt(0)\ns_sub_u32 s61, s76, s78\ns_cmp_lt_u32 s61, s60\ns_cbranch_scc1 {lab}\n{out}:")
            return
        lab = a.label("nodump")
        a(f"s_and_b32 s60, s3, 3\ns_cmp_lg_u32 s60, {opt.get('profwave', 0)}\ns_cbranch_scc1 {lab}")
        a(f"s_lshl_b32 s60, s2, 8\ns_add_u32 s60, s60, {WS_PROF + 128*role}\nv_mov_b32 v3, 0\ns_mov_b64 exec, 1")
        for g in range(6):
            for i in range(4):
                a(f"v_mov_b32 v{16+4*g+i}, s{78+4*g+i}")
            a(f"buffer_store_dwordx4 v[{16+4*g}:{19+4*g}], v3, {srd(S_WS)}, s60 offen offset:{16*g}")
        a(f"{lab}:")

    def lds_set(off):
        a(f"ds_write_b32 v14, v13 offset:{off}")

    def lds_wait(addr_v, off, tmp, sleep=0):
        lab = a.label("lw"); out = a.label("lwo"); ent = a.label("lwe")
        a("s_mov_b32 s60, 0")
        if sleep: a(f"s_branch {ent}")
        a(f"{lab}:")
        if sleep: a(f"s_sleep {sleep}\n{ent}:")
        a(f"ds_read_b32 v{tmp}, v{addr_v} offset:{off}\ns_add_u32 s60, s60, 1\ns_cmp_gt_u32 s60, {SPIN_MAX*8}\ns_cbranch_scc1 {out}")
        a(f"s_waitcnt lgkmcnt(0)\nv_cmp_eq_u32 vcc, 0, v{tmp}\ns_cbranch_vccnz {lab}")
        a(f"{out}:\ns_waitcnt lgkmcnt(0)")

    def flag_regs(wave_s):
        a(f"s_lshl2_add_u32 s60, s{wave_s}, {L_FLG}\nv_mov_b32 v14, s60\ns_xor_b32 s60, s60, 4\nv_mov_b32 v12, s60")
        a(f"v_and_b32 v15, 3, v0\nv_lshlrev_b32 v15, 2, v15\nv_add_u32 v15, {L_FLG}, v15\nv_mov_b32 v13, 1")

    def ssignal(off_s):
        a(f"s_atomic_add s59, s[{S_WS}:{S_WS+1}], s{off_s}")

    def spoll_issue(off_s):
        a(f"s_waitcnt lgkmcnt(0)\ns_mov_b32 s58, 0\ns_atomic_add s58, s[{S_WS}:{S_WS+1}], s{off_s} glc")

    def spoll_check(off_s, target, sleep=2):
        lab = a.label("sp"); out = a.label("spo")
        a(f"s_mov_b32 vcc_lo, 0\n{lab}:\ns_waitcnt lgkmcnt(0)\ns_cmp_ge_u32 s58, {target}\ns_cbranch_scc1 {out}")
        if sleep: a(f"s_sleep {sleep}")
        a(f"s_mov_b32 s58, 0\ns_atomic_add s58, s[{S_WS}:{S_WS+1}], s{off_s} glc")
        a(f"s_add_u32 vcc_lo, vcc_lo, 1\ns_cmp_lt_u32 vcc_lo, {SPIN_MAX}\ns_cbranch_scc1 {lab}\ns_waitcnt lgkmcnt(0)")
        a(f"{out}:")

    a("L_start:")
    a("s_cmp_ge_u32 s2, 256\ns_cbranch_scc1 L_end")
    a(f"s_load_dwordx2 s[{S_Q}:{S_Q+1}], s[0:1], 0")
    a(f"s_load_dwordx2 s[{S_WS}:{S_WS+1}], s[0:1], 96")
    if prof: a("s_memrealtime s[78:79]")
    a("v_lshrrev_b32 v1, 6, v0")
    a(f"s_and_b32 s{S_XCD}, s2, 7\ns_lshr_b32 s{S_J}, s2, 3")
    a("v_readfirstlane_b32 s3, v1")
    if opt.get("codepf", 1):
        a(f"s_getpc_b64 s[60:61]\nL_pc:\ns_mul_i32 s58, s{S_J}, 1280\ns_min_u32 s58, s58, L_end-L_pc-1280\ns_add_u32 s60, s60, s58\ns_addc_u32 s61, s61, 0")
        a("v_and_b32 v2, 255, v0\nv_min_u32 v2, 159, v2\nv_lshlrev_b32 v2, 3, v2\nv_mov_b32 v3, 0\nv_lshl_add_u64 v[2:3], v[2:3], 0, s[60:61]")
    a("v_and_b32 v0, 63, v0")
    a(f"s_and_b32 s58, s2, 1\ns_and_b32 s59, s{S_J}, 3\ns_lshr_b32 s60, s2, 5\ns_lshr_b32 s61, s{S_XCD}, 1")
    a(f"s_lshl2_add_u32 s{S_MI}, s61, s59\ns_lshl2_add_u32 s{S_TT2}, s{S_XCD}, s59\ns_xor_b32 s{S_DB2}, s60, 4")
    a(f"s_lshl1_add_u32 s{S_R2}, s59, s60\ns_and_b32 s61, s61, 1\ns_add_u32 s{S_ROT}, s{S_R2}, s61\ns_and_b32 s{S_ROT}, s{S_ROT}, 7")
    a(f"s_mul_i32 s{S_R2}, s{S_R2}, 11\ns_lshr_b32 s{S_R2}, s{S_R2}, 2")
    a(f"s_lshr_b32 s59, s59, 1\ns_xor_b32 s59, s59, s58\ns_add_u32 s59, s59, 14\ns_mul_i32 s58, s58, 7\ns_add_u32 s58, s58, s60\ns_cmp_eq_u32 s60, 7\ns_cselect_b32 s{S_FI}, s59, s58")
    a("s_mov_b32 s59, 1")
    srdw(a, S_Q, 2097152)
    srdw(a, S_WS, WS_SIZE)
    a("s_cmp_lt_u32 s3, 4\ns_cbranch_scc0 L_Y")

    role_now[0] = 0
    xvm = VmTracker(a)
    if opt.get("codepf", 1): xvm.issue("global_load_dword v11, v[2:3], off", "pf")
    a(f"s_load_dwordx2 s[{S_K}:{S_K+1}], s[0:1], 8\ns_load_dwordx2 s[{S_V}:{S_V+1}], s[0:1], 16\ns_load_dwordx2 s[{S_SK}:{S_SK+1}], s[0:1], 24")
    srdw(a, S_K, 2097152); srdw(a, S_V, 2097152); srdw(a, S_SK, 4096)
    a(f"s_lshl2_add_u32 s60, s{S_TT2}, s3\ns_lshl_b32 s61, s60, 14\ns_lshl_b32 s62, s{S_DB2}, 7\ns_add_u32 s61, s61, s62")
    a("v_and_b32 v1, 31, v0\nv_lshrrev_b32 v2, 5, v0\nv_lshlrev_b32 v3, 13, v2\nv_lshl_add_u32 v3, v1, 2, v3\nv_add_u32 v4, s61, v3\nv_subrev_u32 v5, 3072, v4")
    a(f"s_lshl_b32 s62, s{S_DB2}, 9\nv_lshl_add_u32 v6, v1, 4, s62")
    a(f"s_lshl4_add_u32 s63, s{S_MI}, s{S_FI}\ns_lshl2_add_u32 s63, s63, s3\ns_lshl_b32 s64, s63, 11\nv_lshlrev_b32 v7, 10, v2\nv_lshl_add_u32 v7, v1, 4, v7\nv_add_u32 v7, s64, v7")
    a("s_movk_i32 s65, 4096")
    a("s_waitcnt lgkmcnt(0)")
    stamp("karg")
    for i in range(3): xvm.issue(f"buffer_load_dword v{16+i}, v5, {srd(S_K)}, 0 offen offset:{1024*i}", "k")
    for i in range(8): xvm.issue(f"buffer_load_dword v{19+i}, v4, {srd(S_K)}, {'0' if i < 4 else 's65'} offen offset:{1024*(i%4)}", "k")
    xvm.issue(f"buffer_load_dwordx4 v[36:39], v6, {srd(S_SK)}, 0 offen", "k")
    for i in range(8): xvm.issue(f"buffer_load_dword v{28+i}, v4, {srd(S_V)}, {'0' if i < 4 else 's65'} offen offset:{1024*(i%4)}", "v")
    xvm.issue(f"buffer_load_dwordx4 v[40:43], v7, {srd(S_Q)}, 0 offen", "s")
    xvm.issue(f"buffer_load_dwordx4 v[44:47], v7, {srd(S_Q)}, 0 offen offset:512", "s")
    a("s_branch L_X2")

    a("L_Y:")
    role_now[0] = 1
    YW, XLO, GLO, CIX, CH, DH, DCH = 62, 63, 64, 65, 68, 69, 70
    a(f"s_load_dwordx2 s[{S_WG}:{S_WG+1}], s[0:1], 56\ns_load_dwordx2 s[{S_WU}:{S_WU+1}], s[0:1], 64")
    a(f"s_sub_u32 s{YW}, s3, 4")
    srdw(a, S_WG, 1409024)
    srdw(a, S_WU, 1409024)
    a(f"s_mul_i32 s63, s{YW}, 44032\ns_mul_i32 s64, s{S_FI}, 192\ns_add_u32 s63, s63, s64\ns_movk_i32 s65, 2752")
    a(f"s_sub_u32 s64, s65, s64\ns_lshr_b32 s64, s64, 4\ns_cmp_eq_u32 s{S_FI}, 15\ns_cselect_b32 s64, 0, s64")
    a("v_mov_b32 v11, 0x80000000")
    for i in range(3):
        a(f"v_add_u32 v1, {64*i}, v0\nv_mul_u32_u24 v2, 43691, v1\nv_lshrrev_b32 v2, 19, v2")
        a("v_mul_u32_u24 v3, 12, v2\nv_sub_u32 v1, v1, v3")
        a("v_lshrrev_b32 v3, 2, v2\nv_and_b32 v3, 2, v3\nv_xor_b32 v1, v1, v3")
        a("v_cmp_gt_u32 vcc, s64, v1\nv_mul_u32_u24 v2, s65, v2\nv_lshl_add_u32 v2, v1, 4, v2\nv_add_u32 v2, s63, v2")
        a(f"v_cndmask_b32 v{8+i}, v11, v2, vcc")
    a("v_lshrrev_b32 v17, 3, v0\nv_and_b32 v18, 7, v0\nv_lshrrev_b32 v2, 4, v0\nv_xor_b32 v3, v18, v2\nv_lshlrev_b32 v3, 4, v3\nv_lshl_add_u32 v16, v17, 10, v3")
    a(f"s_lshl2_add_u32 s63, s{S_MI}, s{YW}\ns_lshl_b32 s63, s63, 15\ns_cmp_eq_u32 s{S_FI}, 15\ns_cselect_b32 s63, 0x80000000, s63")
    a("v_add_u32 v4, s63, v16\nv_xor_b32 v5, 64, v4\nv_add_u32 v5, 8192, v5\nv_add_u32 v6, 16384, v4\nv_add_u32 v7, 16384, v5")
    a(f"s_lshl_b32 s{XLO}, s{YW}, 12\ns_mul_i32 s{GLO}, s{YW}, 3072\ns_add_u32 s{GLO}, s{GLO}, {GOFF}\ns_mov_b32 s{CIX}, s{S_ROT}")

    vm = VmTracker(a)
    dmas = []
    for c in range(8):
        base = (c % 3) * STAGE
        W = []
        for i in range(3):
            for gu in range(2):
                W.append((f"s_add_u32 m0, s{GLO}, {base + gu*(UOFF-GOFF) + 1024*i}", f"buffer_load_dwordx4 v{8+i}, {srd((S_WG, S_WU)[gu])}, s67 offen lds"))
        Xd = [(f"s_add_u32 m0, s{XLO}, {base + 1024*i}", f"buffer_load_dwordx4 v{4+i}, {srd(S_Q)}, s66 offen lds") for i in range(4)]
        seq = (Xd + W) if c in opt.get("xfirst", ()) else (W + Xd)
        for k, (m, d) in enumerate(seq): dmas.append((c, k, m, d))
    def chunk_op(c, k, m, d):
        def f():
            if k == 0: a(f"s_lshl_b32 s66, s{CIX}, 7\ns_mul_i32 s67, s{CIX}, 176128")
            a(m)
            a({0: f"s_add_u32 s{CIX}, s{CIX}, 1", 1: f"s_and_b32 s{CIX}, s{CIX}, 7"}.get(k, "s_nop 0"))
            vm.issue(d, ("c", c))
        return (("c", c), f)
    stream = [chunk_op(*x) for x in dmas]
    npos = [0]
    def issue_to(n):
        while npos[0] < min(n, len(stream)):
            stream[npos[0]][1](); npos[0] += 1
    def pos_end(c):
        return max(k for k, x in enumerate(stream) if x[0] == ("c", min(c, 7))) + 1
    AH = opt.get("ahead", [10, 5, 6, 9, 9, 9, 10])
    def target(p):
        return min(pos_end(p + 1) + AH[p + 1], pos_end(p + 2))

    a("s_waitcnt lgkmcnt(0)")
    stamp("karg")
    issue_to(opt.get("first", 5))
    a(f"s_load_dwordx2 s[{S_SM}:{S_SM+1}], s[0:1], 32\ns_load_dwordx2 s[{S_SD}:{S_SD+1}], s[0:1], 40")
    a(f"s_load_dwordx2 s[{S_WD}:{S_WD+1}], s[0:1], 72\ns_load_dwordx2 s[{S_DBG}:{S_DBG+1}], s[0:1], 88")
    srdw(a, S_SM, 2097152); srdw(a, S_WD, 1409024)
    R = {}
    nxt = [184]
    def reg(name, n=1):
        R[name] = nxt[0]; nxt[0] += n
        assert nxt[0] <= 224
        return R[name]
    a("v_and_b32 v1, 15, v0")
    flag_regs(YW)
    a(f"s_lshr_b32 s{CH}, s{YW}, 1\ns_and_b32 s{DH}, s{YW}, 1")
    a(f"s_and_b32 s60, s{S_J}, 15\ns_lshl1_add_u32 s60, s60, s{CH}\ns_lshr_b32 s61, s{S_J}, 4\ns_lshl1_add_u32 s60, s60, s61")
    a(f"s_lshl_b32 s61, s{S_XCD}, 6\ns_add_u32 s{DCH}, s60, s61")
    c0, c1 = reg("cra0"), reg("cra1")
    a(f"v_lshrrev_b32 v3, 2, v1\nv_lshl_add_u32 v3, v2, 3, v3\nv_mul_u32_u24 v3, 192, v3\nv_and_b32 v{c0}, 3, v1\nv_lshl_add_u32 v3, v{c0}, 3, v3")
    a(f"s_mul_i32 s60, s{CH}, {UOFF-GOFF}\ns_add_u32 s60, s60, {GOFF}\nv_add_u32 v3, s60, v3")
    a(f"v_and_b32 v{c0}, 1, v2\ns_mul_i32 s60, s{DH}, 3\ns_add_u32 s61, s60, 1")
    a(f"v_xor_b32 v{c1}, s61, v{c0}\nv_xor_b32 v{c0}, s60, v{c0}\nv_lshl_add_u32 v{c0}, v{c0}, 5, v3\nv_lshl_add_u32 v{c1}, v{c1}, 5, v3")
    for i in range(4): a(f"v_mov_b32 v{72+i}, 0x3f803f80")
    a(f"s_lshr_b32 s60, s{S_MI}, 3\ns_lshl1_add_u32 s60, s{S_FI}, s60\ns_lshl_b32 s38, s60, 7\ns_add_u32 s38, s38, {C_CS}\ns_mul_i32 s60, s60, 6144\ns_mul_i32 s61, s{YW}, 192\ns_add_u32 s60, s60, s61\ns_add_u32 s60, s60, {WS_CSP}")
    a(f"v_lshl_add_u32 v3, v0, 2, s60\nv_cmp_gt_u32 vcc, 48, v0\ns_and_b32 s61, s{S_MI}, 7\ns_mul_i32 s61, s61, 768\ns_add_u32 s60, s60, s61")
    a(f"v_lshl_add_u32 v{reg('csst')}, v2, 4, s60\nv_cndmask_b32 v{reg('csld')}, v11, v3, vcc\nv_add_u32 v{reg('csld2')}, 3072, v{R['csld']}")
    r0, r1, r2 = reg("kvl"), reg("kvg0"), reg("kvg1")
    a(f"v_xor_b32 v{r0}, v18, v17\nv_lshlrev_b32 v{r0}, 4, v{r0}\nv_lshl_add_u32 v{r0}, v17, 7, v{r0}")
    a(f"s_lshl_b32 s60, s{YW}, 11\ns_add_u32 s60, s60, {L_KVS}\nv_add_u32 v{r0}, s60, v{r0}")
    a(f"v_lshlrev_b32 v{r1}, 4, v18\nv_lshl_add_u32 v{r1}, v17, 12, v{r1}")
    a(f"s_lshl2_add_u32 s60, s{S_DB2}, s{YW}\ns_lshl_b32 s60, s60, 16\ns_lshl_b32 s61, s{S_TT2}, 7\ns_sub_u32 s60, s60, s61\ns_add_u32 s60, s60, {WS_KVT + 31*128}\nv_add_u32 v{r1}, s60, v{r1}\nv_add_u32 v{r2}, 32768, v{r1}")
    a(f"s_lshl2_add_u32 s60, s{S_MI}, s{YW}\ns_lshl_b32 s60, s60, 8\ns_add_u32 s60, s60, {WS_STATS}\nv_and_b32 v3, 31, v0\nv_lshl_add_u32 v{reg('mug')}, v3, 3, s60")
    a(f"s_lshl_b32 s60, s{YW}, 7\ns_add_u32 s61, s60, {L_MU}\nv_lshl_add_u32 v{reg('mul')}, v3, 2, s61\ns_add_u32 s61, s60, {L_ST2}\nv_lshl_add_u32 v{reg('st2l')}, v1, 3, s61")
    a(f"s_mul_i32 s60, s{YW}, 192\ns_add_u32 s60, s60, {L_CS}\nv_lshl_add_u32 v{reg('csl')}, v0, 2, s60")
    a(f"s_lshl_b32 s60, s{S_XCD}, 5\ns_add_u32 s60, s60, s{S_J}\ns_lshl2_add_u32 s60, s60, s{YW}\ns_lshl_b32 s60, s60, 11\ns_add_u32 s60, s60, {WS_KVT}\nv_lshl_add_u32 v{reg('ug')}, v0, 4, s60")
    a(f"s_mul_i32 s73, s{CH}, {USTR}\ns_add_u32 s73, s73, {L_U}\ns_lshl_b32 s61, s{DH}, 11\ns_add_u32 s71, s73, s61")
    a(f"s_lshl_b32 s60, s{DCH}, 12\ns_add_u32 s61, s61, s60\ns_add_u32 s61, s61, {WS_YT}\nv_lshl_add_u32 v{reg('yst')}, v0, 4, s61")
    a(f"s_xor_b32 s61, s{DH}, 1\ns_lshl1_add_u32 s60, s61, s60\nv_lshl_add_u32 v{reg('kcg')}, v0, 4, s60")
    a(f"s_mul_i32 s74, s{YW}, 4160\ns_add_u32 s74, s74, {L_KC}\ns_lshl2_add_u32 s75, s61, s74\ns_add_u32 s75, s75, 28")
    r0 = reg("wdg")
    a(f"v_and_b32 v3, 1, v2\ns_lshl_b32 s60, s{DH}, 1\nv_or_b32 v3, s60, v3\nv_lshlrev_b32 v3, 1, v3\nv_xor_b32 v{r0}, v18, v3\nv_lshlrev_b32 v{r0}, 4, v{r0}")
    a(f"v_lshl_add_u32 v{r0}, v17, 10, v{r0}\ns_lshl_b32 s60, s{YW}, 13\ns_lshl_b32 s61, s{S_DB2}, 7\ns_add_u32 s19, s60, s61\nv_add_u32 v{r0}, s19, v{r0}")
    r0, r1 = reg("xt0"), reg("xt1")
    a(f"s_lshl2_add_u32 s60, s{S_TT2}, s{YW}\ns_lshl_b32 s61, s60, 7\ns_add_u32 s61, s61, {WS_STATS}\nv_lshl_add_u32 v{reg('st2g')}, v1, 3, s61")
    a(f"s_lshl_b32 s60, s60, 14\ns_lshl_b32 s61, s{S_DB2}, 7\ns_add_u32 s60, s60, s61\nv_add_u32 v{r0}, s60, v16\nv_xor_b32 v{r1}, 64, v{r0}\nv_add_u32 v{r1}, 8192, v{r1}")
    a(f"s_lshl_b32 s60, s{YW}, 11\ns_add_u32 s60, s60, {L_XL}\nv_lshl_add_u32 v{reg('xtl')}, v0, 4, s60")
    r0, r1 = reg("yt0"), reg("yt1")
    a(f"v_and_b32 v3, 3, v0\nv_xor_b32 v3, v3, v2\nv_lshlrev_b32 v3, 4, v3\nv_lshl_add_u32 v{r0}, v17, 12, v3\nv_bfe_u32 v3, v0, 2, 1\nv_lshl_add_u32 v{r0}, v3, 9, v{r0}")
    a(f"s_lshl2_add_u32 s60, s{S_DB2}, s{YW}\ns_lshl_b32 s60, s60, 16\ns_lshr_b32 s61, s{S_TT2}, 3\ns_lshl_b32 s61, s61, 10\ns_add_u32 s60, s60, s61")
    a(f"s_and_b32 s61, s{S_TT2}, 7\ns_lshl_b32 s61, s61, 6\ns_add_u32 s60, s60, s61\ns_add_u32 s60, s60, {WS_YT}\nv_add_u32 v{r0}, s60, v{r0}\nv_add_u32 v{r1}, 32768, v{r0}")
    ra, rb = reg("ca", 4), reg("cb")
    a(f"s_mul_i32 s60, s{CH}, 8320\ns_add_u32 s18, s60, {L_KC}\ns_lshl_b32 s61, s{DH}, 8\ns_add_u32 s60, s18, s61")
    a(f"v_and_b32 v3, 1, v1\nv_mul_u32_u24 v{ra}, 4158, v3\nv_lshl_add_u32 v{ra}, v1, 1, v{ra}\nv_lshl_add_u32 v{ra}, v2, 4, v{ra}\nv_add_u32 v{ra}, s60, v{ra}")
    a(f"v_add_u32 v{ra+1}, 1024, v{ra}\nv_add_u32 v{ra+2}, 2048, v{ra}\nv_add_u32 v{ra+3}, 3072, v{ra}")
    a(f"s_add_u32 s60, s73, s61\ns_add_u32 s17, s60, 4096\ns_add_u32 s60, s60, 480\nv_lshlrev_b32 v3, 1, v1\nv_sub_u32 v3, v2, v3\nv_lshl_add_u32 v{rb}, v3, 4, s60")
    a(f"s_lshl_b32 s61, s{DH}, 12\ns_add_u32 s60, s18, s61\nv_lshl_add_u32 v{reg('exo')}, v0, 4, s60\ns_xor_b32 s61, s61, 4096\ns_add_u32 s60, s18, s61\nv_lshl_add_u32 v{reg('exp')}, v0, 4, s60")
    a("v_mov_b32 v19, 0\nv_lshl_add_u32 v3, v0, 2, s17\nds_write_b32 v3, v19")
    a(f"s_lshl_b32 s8, s{S_DB2}, 7\ns_lshl_b32 s9, s{S_MI}, 7\ns_add_u32 s9, s9, {C_ST}")
    a(f"s_lshr_b32 s60, s{S_TT2}, 1\ns_lshl_b32 s60, s60, 7\ns_add_u32 s60, s60, {C_ST}\ns_cmp_eq_u32 s{YW}, 1\ns_cselect_b32 s60, s9, s60")
    a(f"s_lshl_b32 s61, s{S_XCD}, 7\ns_cmp_eq_u32 s{YW}, 0\ns_cselect_b32 s10, s61, s60\ns_cselect_b32 s11, 32, 16")
    a(f"s_cmp_eq_u32 s{YW}, 3\ns_cselect_b32 s10, s38, s10\ns_cselect_b32 s11, 8, s11")
    a(f"s_lshr_b32 s60, s{DCH}, 4\ns_lshl1_add_u32 s60, s60, s{DH}\ns_lshl_b32 s60, s60, 7\ns_add_u32 s12, s60, {C_Y}")
    a(f"s_lshl2_add_u32 s60, s{S_DB2}, s{YW}\ns_lshr_b32 s61, s{S_TT2}, 4\ns_lshl1_add_u32 s60, s60, s61\ns_lshl_b32 s60, s60, 7\ns_add_u32 s13, s60, {C_Y}")
    for kh in range(2):
        a(f"s_sub_u32 s{14+kh}, s{S_R2}, {22-kh}\ns_cselect_b32 s{14+kh}, s{S_R2}, s{14+kh}")
    a("s_waitcnt lgkmcnt(0)")
    a(f"s_lshl_b32 s60, s{DCH}, 12\ns_load_dword s36, s[{S_SM}:{S_SM+1}], s60")
    a(f"s_andn2_b32 s61, s{DCH}, 1\ns_lshl_b32 s61, s61, 1\ns_load_dword s72, s[{S_SD}:{S_SD+1}], s61")
    stamp("setup")
    a(f"s_setprio {opt.get('yprio', 2)}")
    issue_to(target(-1))
    a("s_waitcnt lgkmcnt(0)")
    a(f"v_lshl_add_u32 v3, v0, 2, s74\ns_lshl_b32 s36, s36, 16\nv_writelane_b32 v19, s36, 7")
    a(f"s_lshr_b32 s60, 255, s{DH}\ns_mov_b32 exec_lo, s60\ns_mov_b32 exec_hi, 0\nds_write_b32 v3, v19\ns_mov_b64 exec, -1")
    a(f"s_and_b32 s60, s{DCH}, 1\ns_lshl_b32 s60, s60, 4\ns_lshr_b32 s72, s72, s60\ns_and_b32 s72, s72, 0xffff\ns_cmp_eq_u32 s{DH}, 0\ns_cselect_b32 s72, s72, 0")
    DG = 168
    a("v_lshl_add_u32 v3, v2, 3, v1\nv_sub_u32 v3, 15, v3\nv_and_b32 v20, 1, v3\nv_lshlrev_b32 v20, 4, v20\nv_lshlrev_b32 v20, v20, s72\nv_lshrrev_b32 v3, 1, v3")
    for i in range(4): a(f"v_cmp_eq_u32 vcc, {i}, v3\ns_nop 1\nv_cndmask_b32 v{DG+i}, 0, v20, vcc")

    B0R = 96
    a(f"s_lshl_b32 s16, s{YW}, 10\ns_add_u32 s60, s16, {2*STAGE}\nv_lshl_add_u32 v{reg('b0l')}, v0, 4, s60")
    def wd_lds(p, kh):
        if p < 5: return 2*STAGE + kh*20480 + p*4096
        if p == 5: return L_E + kh*4096
        return kh*20480 + (p - 6)*4096
    def y_wd(p, kh, toreg, tag):
        a(f"s_add_u32 s60, s{14+kh}, {p}\ns_sub_u32 s61, s60, {22-kh}\ns_cselect_b32 s61, s60, s61\ns_add_u32 s61, s61, {22*kh}")
        if toreg:
            a("s_lshl_b32 s61, s61, 15")
            vm.issue(f"buffer_load_dwordx4 {vr(B0R + 4*(5*kh+p), 4)}, v{R['wdg']}, {srd(S_WD)}, s61 offen", tag)
        else:
            a(f"s_add_u32 m0, s16, {wd_lds(p, kh)}\ns_lshl_b32 s61, s61, 15")
            vm.issue(f"buffer_load_dwordx4 v{R['wdg']}, {srd(S_WD)}, s61 offen lds", tag)
    def y_kc(i):
        a("s_mov_b32 m0, s75\ns_nop 0")
        vm.issue(f"buffer_load_dwordx4 v{R['kcg']}, {srd(S_SM)}, 0 offen offset:{1024*i} lds", "uk")
    def batch_ops():
        out = []
        if PLACE[0] == "S":
            for i in range(4): out.append(("kc", lambda i=i: y_kc(i)))
        for p in range(6):
            if PLACE[1 + p] != "S": continue
            for kh in range(2): out.append(("b0", lambda p=p, kh=kh: y_wd(p, kh, p < 5, "b0")))
        return out
    CLS = opt.get("cls", [2, 3, 4, 5] if "S" in PLACE else [2])
    if opt.get("clsmode", 1) == 0: a(f"s_lshr_b32 s60, s{S_J}, 2\ns_add_u32 s60, s60, s{S_J}\ns_and_b32 s37, s60, {len(CLS)-1}")
    else: a(f"s_add_u32 s60, s{S_J}, s{S_XCD}\ns_and_b32 s37, s60, {len(CLS)-1}")

    vm.need(("c", 0), "lgkmcnt(0)")
    stamp("c0land")
    a("s_barrier")
    a(f"ds_read_b128 v[60:63], v{R['kvl']}\nds_read_b128 v[64:67], v{R['kvl']} offset:1024")
    for jj in range(3):
        for ks in range(2):
            for h in range(2):
                r = 32 + 8 * jj + 4 * ks + 2 * h
                a(f"ds_read_b64_tr_b16 {vr(r,2)}, v{R['cra1'] if jj == 1 else R['cra0']} offset:{ks*6144 + h*768 + (64 if jj == 2 else 0)}")
    a("s_waitcnt lgkmcnt(12)")
    vm.issue(f"buffer_store_dwordx4 v[60:63], v{R['kvg0']}, {srd(S_WS)}, 0 offen sc1", "st")
    vm.issue(f"buffer_store_dwordx4 v[64:67], v{R['kvg1']}, {srd(S_WS)}, 0 offen sc1", "st")
    a("s_waitcnt lgkmcnt(0)")
    for ks in range(2):
        for jj in range(3):
            c = 20 + 4 * jj
            a(f"v_mfma_f32_16x16x32_bf16 {vr(c,4)}, {vr(32+8*jj+4*ks,4)}, v[72:75], {'0' if ks == 0 else vr(c,4)}")
    a("s_mov_b32 exec_lo, 0x00010001\ns_mov_b32 exec_hi, 0x00010001\ns_nop 5")
    for jj in range(3):
        vm.issue(f"buffer_store_dwordx4 {vr(20+4*jj,4)}, v{R['csst']}, {srd(S_WS)}, 0 offen offset:{64*jj} sc1", "st")
    a("s_mov_b64 exec, -1")
    issue_to(target(0))
    vm.need(("c", 1)); stamp("a0"); a("s_barrier"); stamp("P0")
    a(f"s_load_dword s58, s[{S_DBG}:{S_DBG+1}], 0")
    base_stream, base_pos, base_q = list(stream), npos[0], list(vm.q)
    nst = len(names[1])
    for ci, b in enumerate(CLS):
        stream[:] = base_stream; npos[0] = base_pos; vm.q = list(base_q)
        del names[1][nst:]
        if isinstance(b, int): b = [b, b]
        ops = batch_ops()
        h = len(ops) // 2
        for bb, part in ((b[1], ops[h:]), (b[0], ops[:h])):
            at = pos_end(bb)
            assert at >= npos[0]
            stream[at:at] = part
        a(f"L_ycls{ci}:")
        if ci + 1 < len(CLS): a(f"s_cmp_lg_u32 s37, {ci}\ns_cbranch_scc1 L_ycls{ci+1}")
        issue_to(target(1))
        vm.need({("c", 2), "st"}); stamp("a1"); a("s_barrier"); stamp("P1")
        a(f"s_cmp_lg_u32 s{YW}, 0\ns_cbranch_scc1 L_ynosig{ci}")
        a(f"s_mov_b32 s60, 0\nL_ygo{ci}:\ns_waitcnt lgkmcnt(0)\ns_cmp_lg_u32 s58, 0\ns_cbranch_scc1 L_ygook{ci}")
        a(f"s_load_dword s58, s[{S_DBG}:{S_DBG+1}], 0 glc\ns_sleep 4\ns_add_u32 s60, s60, 1\ns_cmp_lt_u32 s60, {SPIN_MAX}\ns_cbranch_scc1 L_ygo{ci}\nL_ygook{ci}:")
        ssignal(8)
        ssignal(9)
        ssignal(38)
        a(f"L_ynosig{ci}:")
        for p in (2, 3, 4):
            issue_to(target(p))
            vm.need(("c", p + 1)); stamp(f"a{p}"); a("s_barrier"); stamp(f"P{p}")
        spoll_issue(10)
        issue_to(target(5))
        spoll_check(10, "s11")
        vm.need(("c", 6)); stamp("a5"); a("s_barrier"); stamp("P5")
        issue_to(len(stream))
        assert stream[-1][0] == ("c", 7)
        if ci + 1 < len(CLS): a("s_branch L_yjoin")
    a("L_yjoin:")
    vm.q = [("c", 7)]
    for r in range(8):
        vm.issue(f"buffer_load_dword v{32+r}, v{R['csld'] if r < 4 else R['csld2']}, {srd(S_WS)}, 0 offen offset:{768*(r%4)} sc1", "cs")
    vm.issue(f"buffer_load_dword v40, v{R['mug']}, {srd(S_WS)}, 0 offen sc1", "cs")
    vm.issue(f"buffer_load_dwordx2 v[42:43], v{R['st2g']}, {srd(S_WS)}, 0 offen sc1", "cs")
    a("s_mov_b32 m0, s71\ns_nop 0")
    vm.issue(f"buffer_load_dwordx4 v{R['ug']}, {srd(S_WS)}, 0 offen sc1 lds", "uk")
    vm.issue(f"buffer_load_dwordx4 v{R['ug']}, {srd(S_WS)}, 0 offen offset:1024 sc1 lds", "uk")
    vm.need(("c", 7))
    lds_set(FL_YC7)
    if PLACE[0] != "S":
        for i in range(4): y_kc(i)
    vm.issue(f"buffer_load_dwordx4 v[160:163], v{R['xt0']}, {srd(S_Q)}, 0 offen", "xt")
    vm.issue(f"buffer_load_dwordx4 v[164:167], v{R['xt1']}, {srd(S_Q)}, 0 offen", "xt")
    flq = [5*kh + p for kh in range(2) for p in range(5) if PLACE[1+p] == "S"]
    HASFL = bool(flq)
    def b0_flush(n, sleep=0):
        for _ in range(n):
            if not flq: return
            k = flq.pop(0)
            a(f"ds_write_b128 v{R['b0l']}, {vr(B0R + 4*k, 4)} offset:{(k // 5)*20480 + (k % 5)*4096}")
            if sleep: a(f"s_sleep {sleep}")
    ybq = [(p, kh) for p in range(6) for kh in range(2) if PLACE[1+p] == "Y"]
    for _ in range(opt.get("yb0", 0)):
        if ybq: y_wd(*ybq.pop(0), False, "yb")
    b0_flush(opt.get("fl0", 0), opt.get("flsleep", 2))
    vm.need("cs")
    a("v_add_f32 v32, v32, v33\nv_add_f32 v34, v34, v35\nv_add_f32 v36, v36, v37\nv_add_f32 v38, v38, v39\nv_add_f32 v32, v32, v34\nv_add_f32 v36, v36, v38\nv_add_f32 v32, v32, v36")
    a(f"ds_write_b32 v{R['mul']}, v40\nds_write_b64 v{R['st2l']}, v[42:43]")
    a(f"s_mov_b32 exec_hi, 0xffff\nds_write_b32 v{R['csl']}, v32\ns_mov_b64 exec, -1")
    a("s_waitcnt lgkmcnt(0)")
    lds_set(FL_YCS)
    stamp("csdone")
    while ybq: y_wd(*ybq.pop(0), False, "yb")
    vm.need("uk")
    lds_set(FL_YRDY)
    if YA:
        lds_wait(15, FL_XS0, 16, sleep=1)
        for p in range(6, 11):
            for kh in range(2): y_wd(p, kh, False, "ya")
    stamp("yaissued")
    lds_wait(15, FL_YRDY, 16)
    CACC = 224
    def AF(st, g): return 32 + 64 * st + 4 * g
    def BF(st, m): return 64 + 64 * st + 4 * m
    t = LgkmTracker(a)
    def conv_reads(dl):
        st = dl & 1
        out = []
        for g in range(8):
            o = 128 * (g & 1) + 16 * dl
            out.append(lambda g=g, o=o: t.issue(f"ds_read2_b32 {vr(AF(st,g),2)}, v{R['ca']+(g>>1)} offset0:{o} offset1:{o+1}", ("a", st, g, 0)))
            out.append(lambda g=g, o=o: t.issue(f"ds_read2_b32 {vr(AF(st,g)+2,2)}, v{R['ca']+(g>>1)} offset0:{o+2} offset1:{o+3}", ("a", st, g, 1)))
            out.append(lambda g=g: t.issue(f"ds_read_b128 {vr(BF(st,g),4)}, v{R['cb']} offset:{(7-g)*512 + 64*dl}", ("b", st, g)))
        return out
    for k, f in enumerate(conv_reads(0)):
        f()
        if k % 4 == 3 and not opt.get("fllate", 1): b0_flush(1, opt.get("flsleep2", 1))
    if opt.get("fllate", 1) and HASFL: lds_wait(15, FL_XDONE, 19, sleep=1)
    b0_flush(10)
    t.drain()
    lds_set(FL_YFL)
    stamp("yrdy")
    a("s_setprio 0")
    lds_wait(14, FL_XEPI, 19, sleep=1)
    a(f"s_setprio {opt.get('convprio', 2)}")
    stamp("convstart")
    def conv_mfma(st, N, g):
        t.need({("a", st, g, 0), ("a", st, g, 1), ("b", st, N - g)})
        c = CACC + 4 * N
        a(f"v_mfma_f32_16x16x32_bf16 {vr(c,4)}, {vr(AF(st,g),4)}, {vr(BF(st,N-g),4)}, {vr(c,4)}")
    for dl in range(3):
        pend = conv_reads(dl + 1)
        if dl == opt.get("b0wait", 1):
            vm.drain(); lds_set(FL_YB0); t.q.append(("flag",))
        for N in range(8):
            if dl == 0: a(f"v_mfma_f32_16x16x32_bf16 {vr(CACC+4*N,4)}, {vr(DG,4)}, {vr(BF(0,N),4)}, 0")
            for g in range(N + 1):
                conv_mfma(dl & 1, N, g)
                if pend: pend.pop(0)()
        if opt.get("cst"): stamp(f"dl{dl}"); t.q = []
    t.drain()
    lds_set(FL_YKA)
    a(f"s_cmp_eq_u32 s{DH}, 0\ns_cbranch_scc1 L_yl0")
    for dh in (1, 0):
        if dh == 0: a("L_yl0:")
        order = list(range(8)) if dh == 1 else list(range(7, -1, -1))
        seq = [(N, g) for N in order for g in range(N + 1)]
        done_at = {N: max(k for k, x in enumerate(seq) if x[0] == N) for N in order}
        wq = list(order[:4]); chk = 7
        for k, (N, g) in enumerate(seq):
            conv_mfma(1, N, g)
            if k == chk - 4: a(f"ds_read_b32 v19, v12 offset:{FL_YKA}")
            if k == chk - 1: a("s_waitcnt lgkmcnt(0)\nv_cmp_eq_u32 vcc, 0, v19")
            if k == chk:
                a(f"s_cbranch_vccz L_yka{dh}")
                lds_wait(12, FL_YKA, 19)
                a(f"L_yka{dh}:")
            if k > chk and wq and k >= done_at[wq[0]] + 8:
                N2 = wq.pop(0)
                a(f"ds_write_b128 v{R['exo']}, {vr(CACC+4*N2,4)} offset:{1024*(N2 & 3)}")
        assert not wq
        a("s_waitcnt lgkmcnt(0)")
        lds_set(FL_YKB)
        a("s_setprio 2")
        if dh == 0: stamp("convend")
        lds_wait(12, FL_YKB, 19)
        for i in range(4): a(f"ds_read_b128 {vr(32+4*i,4)}, v{R['exp']} offset:{1024*i}")
        for i in range(4):
            a(f"s_waitcnt lgkmcnt({3-i})")
            for r in range(4): a(f"v_add_f32 v{32+4*i+r}, v{CACC+16*dh+4*i+r}, v{32+4*i+r}")
        if dh == 1: a("s_branch L_ylast")
    a("L_ylast:")
    if opt.get("cst"): stamp("yred")
    lds_set(FL_YFIN)
    for pr in range(2):
        d = 60 + 4 * pr
        for b in range(2):
            c = 32 + 4 * (2 * pr + b)
            a(f"v_cvt_pk_bf16_f32 v{d+2*b}, v{c}, v{c+1}\nv_cvt_pk_bf16_f32 v{d+2*b+1}, v{c+2}, v{c+3}")
        a(f"s_nop 1\nv_permlane16_swap_b32 v{d}, v{d+2}\nv_permlane16_swap_b32 v{d+1}, v{d+3}")
        a(f"buffer_store_dwordx4 {vr(d,4)}, v{R['yst']}, {srd(S_WS)}, 0 offen offset:{1024*pr} sc1")
    if opt.get("cst"): stamp("ystored")
    lds_wait(15, FL_YFIN, 16)
    a(f"ds_write_b128 v{R['xtl']}, v[160:163]\nds_write_b128 v{R['xtl']}, v[164:167] offset:1024\ns_waitcnt lgkmcnt(0)")
    lds_set(FL_YXL)
    a("s_waitcnt vmcnt(0)")
    stamp("yflag")
    ssignal(12)
    spoll_issue(13)
    spoll_check(13, 16)
    stamp("ypolled")
    lds_wait(15, FL_XHI, 16, sleep=1)
    a(f"s_lshl_b32 s63, s{YW}, 11\ns_add_u32 m0, s63, {L_YL}\ns_nop 0")
    a(f"buffer_load_dwordx4 v{R['yt0']}, {srd(S_WS)}, 0 offen sc1 lds")
    a("s_add_u32 m0, m0, 1024\ns_nop 0")
    a(f"buffer_load_dwordx4 v{R['yt1']}, {srd(S_WS)}, 0 offen sc1 lds")
    a("s_waitcnt vmcnt(0)")
    stamp("ylanded")
    a("s_barrier")
    dump_stamps(1)
    a("s_endpgm")

    a("L_X2:")
    role_now[0] = 0
    a(f"s_load_dwordx2 s[{S_WD}:{S_WD+1}], s[0:1], 72\ns_load_dwordx2 s[{S_OUT}:{S_OUT+1}], s[0:1], 80\ns_load_dwordx2 s[{S_DBG}:{S_DBG+1}], s[0:1], 88")
    srdw(a, S_WD, 1409024); srdw(a, S_OUT, 2097152)
    ACC, XF, WF = 160, 16, 80
    a(f"v_mov_b32 v10, 0\nv_lshlrev_b32 v8, 2, v0\nv_add_u32 v8, {L_FLG}, v8\nds_write2st64_b32 v8, v10, v10 offset0:0 offset1:1")
    a("s_xor_b32 s61, s2, 254\ns_or_b32 s61, s61, s3\ns_cbranch_scc1 L_noclear")
    a("v_lshlrev_b32 v8, 7, v0\ns_movk_i32 s61, 8192\ns_movk_i32 s62, 16384")
    for so in ("0", "s61", "s62"): a(f"buffer_store_dword v10, v8, {srd(S_WS)}, {so} offen sc1")
    a(f"s_waitcnt vmcnt(0) lgkmcnt(0)\ns_atomic_add s59, s[{S_DBG}:{S_DBG+1}], 0")
    a("L_noclear:")
    a(f"s_lshl_b32 s61, s3, 1\ns_sub_u32 s61, 7, s61\nv_sub_u32 v8, s61, v2\nv_xor_b32 v8, v8, v1\nv_and_b32 v8, 7, v8\nv_lshlrev_b32 v8, 4, v8\nv_lshl_add_u32 v8, v1, 7, v8\nv_add_u32 v8, {L_KVS}, v8")
    a(f"s_lshl_b32 s64, s63, 4\ns_add_u32 s64, s64, {WS_STATS}\nv_lshl_add_u32 v9, v2, 3, s64")
    TWs, CWs, C3 = 62, 63, 64
    AD = 132
    CSR, MUR = 104, 128
    V_CS, V_MU, V_H0, V_H1 = 144, 145, 146, 147
    a(f"s_and_b32 s{TWs}, s3, 1\ns_lshr_b32 s{CWs}, s3, 1\ns_mul_i32 s{C3}, s{CWs}, 3")
    a("v_and_b32 v1, 15, v0\nv_lshrrev_b32 v2, 4, v0")
    a("v_lshrrev_b32 v3, 1, v1\nv_xor_b32 v3, v3, v2\nv_lshlrev_b32 v3, 4, v3\nv_lshl_add_u32 v3, v1, 7, v3")
    a(f"s_lshl_b32 s60, s{TWs}, 13\nv_add_u32 v{AD}, s60, v3\nv_xor_b32 v{AD+1}, 64, v{AD}")
    a("v_lshrrev_b32 v3, 2, v1\nv_lshl_add_u32 v4, v2, 3, v3\nv_mul_u32_u24 v3, 192, v4\nv_and_b32 v5, 3, v1\nv_lshl_add_u32 v3, v5, 3, v3")
    a(f"v_add_u32 v3, {GOFF}, v3\nv_and_b32 v6, 1, v2\ns_add_u32 s60, s{C3}, 1")
    a(f"v_xor_b32 v7, s60, v6\nv_lshl_add_u32 v{AD+3}, v7, 5, v3\nv_xor_b32 v7, s{C3}, v6\nv_lshl_add_u32 v{AD+2}, v7, 5, v3")
    for sl in (1, 2):
        for q in range(4): a(f"v_add_u32 v{AD+4*sl+q}, {sl*STAGE}, v{AD+q}")
    flag_regs(3)
    a(f"s_lshl_b32 s60, s{C3}, 6\ns_add_u32 s60, s60, {L_CS}\nv_lshl_add_u32 v{V_CS}, v2, 4, s60")
    a(f"s_lshl_b32 s60, s{TWs}, 8\ns_add_u32 s60, s60, {L_MU}\nv_lshl_add_u32 v{V_MU}, v1, 2, s60")
    a("v_mul_u32_u24 v3, 44032, v6\nv_lshrrev_b32 v7, 1, v2\nv_lshl_add_u32 v3, v7, 8, v3\nv_lshl_add_u32 v3, v1, 4, v3")
    a(f"s_lshl1_add_u32 s67, s{S_MI}, s{TWs}\ns_mul_i32 s60, s67, 176128\ns_mul_i32 s68, s{S_FI}, 6\ns_add_u32 s68, s68, s{C3}")
    a(f"s_lshl_b32 s61, s68, 9\ns_add_u32 s60, s60, s61\ns_add_u32 s60, s60, {WS_H}\nv_add_u32 v{V_H0}, s60, v3\nv_add_u32 v{V_H1}, 88064, v{V_H0}")
    a(f"s_lshl_b32 s65, s67, 8\ns_add_u32 s65, s65, {C_H}\ns_lshl1_add_u32 s66, s{S_FI}, s{CWs}")
    TH, KH = TWs, CWs
    a("v_lshlrev_b32 v4, 7, v4\nv_lshl_add_u32 v4, v5, 3, v4\nv_lshlrev_b32 v10, 1, v6\nv_lshrrev_b32 v5, 3, v1\nv_or_b32 v3, v10, v5\nv_lshl_add_u32 v4, v3, 5, v4")
    a(f"s_mul_i32 s69, s{KH}, 20480\ns_add_u32 s60, s69, {2*STAGE}\nv_add_u32 v4, s60, v4")
    a("v_xor_b32 v5, 32, v4\nv_xor_b32 v6, 64, v4\nv_xor_b32 v7, 96, v4")
    a("v_and_b32 v3, 7, v0\nv_xor_b32 v3, v3, v10\nv_lshlrev_b32 v3, 4, v3\nv_lshrrev_b32 v10, 3, v0\nv_lshl_add_u32 v3, v10, 10, v3")
    a(f"s_lshl_b32 s60, s{TH}, 14\ns_lshl_b32 s61, s{S_DB2}, 7\ns_add_u32 s60, s60, s61\nv_add_u32 v148, s60, v3\nv_xor_b32 v149, 64, v148\nv_add_u32 v149, 8192, v149")
    a(f"s_lshl1_add_u32 s60, s{S_TT2}, s{TH}\ns_lshl1_add_u32 s75, s60, s{KH}\ns_mul_i32 s61, s60, 88064\ns_add_u32 s61, s61, {WS_H}")
    a("v_lshl_add_u32 v150, v0, 4, s61\nv_add_u32 v151, 44032, v150")
    xvm.need("k")
    stamp("kvland")
    KF, TW, VF, KS = 48, 72, 80, 96
    for i in range(11): a(f"v_lshlrev_b32 v{KF+2*i}, 16, v{16+i}\nv_and_b32 v{KF+2*i+1}, 0xffff0000, v{16+i}")
    for c in range(2):
        for hh in range(2):
            a(f"v_lshlrev_b32 v{TW+4*hh+c}, 16, v{36+2*c+hh}\nv_and_b32 v{TW+4*hh+2+c}, 0xffff0000, v{36+2*c+hh}")
    for i in range(8):
        a(f"v_pk_mul_f32 {vr(KS+2*i,2)}, {vr(KF+2*i,2)}, {vr(TW+6,2)}")
    for jt in (2, 1, 0):
        for i in range(8):
            a(f"v_pk_fma_f32 {vr(KS+2*i,2)}, {vr(KF+2*(i+3-jt),2)}, {vr(TW+2*jt,2)}, {vr(KS+2*i,2)}")
    xvm.need("v")
    for i in range(8): a(f"v_lshlrev_b32 v{VF+2*i}, 16, v{28+i}\nv_and_b32 v{VF+2*i+1}, 0xffff0000, v{28+i}")
    for i in range(8): a(f"v_pk_mul_f32 {vr(KS+2*i,2)}, {vr(KS+2*i,2)}, {vr(VF+2*i,2)}")
    for c in range(2):
        for m in range(4):
            a(f"v_cvt_pk_bf16_f32 v{16+4*c+m}, v{KS+2*(7-2*m)+c}, v{KS+2*(6-2*m)+c}")
        a(f"ds_write_b128 v8, {vr(16+4*c,4)} offset:{4096*c}")
    xvm.need("s")
    SF = 48
    for i in range(8): a(f"v_lshlrev_b32 v{SF+2*i}, 16, v{40+i}\nv_and_b32 v{SF+2*i+1}, 0xffff0000, v{40+i}")
    def reduce32(src):
        a(f"v_add_f32 v{src}, v{src}, v{src+1}\ns_nop 1")
        for ctl in ("row_ror:8", "row_ror:4", "row_ror:2", "row_ror:1"):
            a(f"v_add_f32_dpp v{src}, v{src}, v{src} {ctl} row_mask:0xf bank_mask:0xf\ns_nop 1")
        a(f"v_mov_b32 v{src+1}, v{src}\ns_nop 1\nv_permlane16_swap_b32 v{src}, v{src+1}\nv_add_f32 v{src}, v{src}, v{src+1}")
    for i in range(4): a(f"v_pk_add_f32 {vr(64+2*i,2)}, {vr(SF+2*i,2)}, {vr(SF+8+2*i,2)}")
    a("v_pk_add_f32 v[64:65], v[64:65], v[68:69]\nv_pk_add_f32 v[66:67], v[66:67], v[70:71]\nv_pk_add_f32 v[64:65], v[64:65], v[66:67]")
    reduce32(64)
    a("v_mul_f32 v64, 0x3b000000, v64")
    for i in range(8): a(f"v_pk_add_f32 {vr(SF+2*i,2)}, {vr(SF+2*i,2)}, v[64:65] op_sel_hi:[1,0] neg_lo:[0,1] neg_hi:[0,1]")
    a(f"v_pk_mul_f32 v[66:67], {vr(SF,2)}, {vr(SF,2)}\nv_pk_mul_f32 v[68:69], {vr(SF+2,2)}, {vr(SF+2,2)}")
    for i in range(2, 8): a(f"v_pk_fma_f32 {vr(66+2*(i&1),2)}, {vr(SF+2*i,2)}, {vr(SF+2*i,2)}, {vr(66+2*(i&1),2)}")
    a("v_pk_add_f32 v[66:67], v[66:67], v[68:69]")
    reduce32(66)
    a("v_mul_f32 v66, 0x3b000000, v66")
    a("v_cvt_pk_bf16_f32 v66, v64, v66\nv_lshlrev_b32 v64, 16, v66\nv_and_b32 v66, 0xffff0000, v66\nv_add_f32 v66, 0x3727c5ac, v66")
    a("v_cvt_pk_bf16_f32 v66, v66, v66\nv_and_b32 v66, 0xffff0000, v66\nv_sqrt_f32 v66, v66\ns_nop 0")
    a("v_cvt_pk_bf16_f32 v66, v66, v66\nv_and_b32 v66, 0xffff0000, v66\nv_rcp_f32 v65, v66")
    a("s_mov_b32 exec_lo, 1\ns_mov_b32 exec_hi, 1")
    a(f"buffer_store_dwordx2 v[64:65], v9, {srd(S_WS)}, 0 offen sc1")
    a("s_mov_b64 exec, -1")
    ST = 8
    a(f"s_sub_u32 s70, 22, s{KH}\ns_mul_i32 s71, s{KH}, 22\ns_sub_u32 s60, s{S_R2}, s70\ns_cselect_b32 s72, s{S_R2}, s60")
    a(f"s_add_u32 s72, s72, s71\ns_lshl_b32 s{ST}, s72, 10\ns_add_u32 s70, s70, s71\ns_lshl_b32 s70, s70, 10\ns_lshl_b32 s71, s71, 10")
    for i in range(1, 22):
        a(f"s_add_u32 s{ST+i}, s{ST+i-1}, 1024\ns_cmp_eq_u32 s{ST+i}, s70\ns_cselect_b32 s{ST+i}, s71, s{ST+i}")
    a(f"s_cmp_lg_u32 s{KH}, 0\ns_cselect_b32 s{ST+21}, 0x40000000, s{ST+21}")
    a(f"s_lshl_b32 s73, s{TH}, 11\ns_add_u32 s74, s69, s73")
    a(f"s_lshl_b32 s60, s{KH}, 14\ns_sub_u32 s70, {L_E}, s60\ns_sub_u32 s71, s70, {2*STAGE}\ns_sub_u32 s72, {L_E + 8192 - 2*STAGE}, s69")
    a(f"s_lshl1_add_u32 s67, s{S_TT2}, s{KH}\ns_lshl_b32 s67, s67, 7\ns_add_u32 s67, s67, {C_H}")
    for q in range(4): a(f"v_mov_b32 v{8+q}, v{148+q}")
    HSO = 40
    a("s_waitcnt lgkmcnt(0)")
    for jj in range(3): a(f"s_cmp_ge_u32 s68, {86 - jj}\ns_cselect_b32 s{HSO+jj}, 0x40000000, 0")
    a(f"s_lshl_b32 s60, s{KH}, 12\ns_add_u32 s43, s73, s60")
    a("s_setprio 1")
    a("s_waitcnt lgkmcnt(0)")
    stamp("p0done")
    a("s_barrier")
    stamp("Bstart")
    t = LgkmTracker(a)
    def xread(c, i, ks):
        r = XF + 32 * (c & 1) + 8 * i + 4 * ks
        t.issue(f"ds_read_b128 {vr(r,4)}, v{AD+4*(c%3)+ks} offset:{2048*i}", ("x", c, i, ks))
    def wread(c, j, ks, h):
        jj, gu = j >> 1, j & 1
        r = WF + 8 * (j % 3) + 4 * ks + 2 * h
        off = gu * (UOFF - GOFF) + ks * 6144 + h * 768 + (64 if jj == 2 else 0)
        t.issue(f"ds_read_b64_tr_b16 {vr(r,2)}, v{AD+4*(c%3)+(3 if jj == 1 else 2)} offset:{off}", ("w", c, j, ks, h))
    def first_reads(c):
        out = [lambda: wread(c, 0, 0, 0), lambda: wread(c, 0, 0, 1), lambda: xread(c, 0, 0), lambda: wread(c, 0, 1, 0), lambda: wread(c, 0, 1, 1), lambda: xread(c, 0, 1)]
        for i in range(1, 4):
            for ks in range(2): out.append(lambda i=i, ks=ks: xread(c, i, ks))
        return out
    for f in first_reads(0): f()
    BAR = opt.get("bar", 33)
    slow = []
    def flag_check(put, at, off, name):
        put(at - 5, lambda: t.issue(f"ds_read_b32 v3, v15 offset:{off}", ("flag",)))
        def f1():
            t.drain(); a("v_cmp_eq_u32 vcc, 0, v3")
        put(at - 1, f1)
        def f2():
            if opt.get("xst") and name in ("c7", "cs"): stamp("a" + name)
            a(f"s_cbranch_vccnz L_slow_{name}\nL_back_{name}:")
            if opt.get("xst") and name in ("c7", "cs"): stamp("p" + name)
        put(at, f2)
        slow.append((off, name))
    for c in range(8):
        fill = {}
        def put(slot, f): fill.setdefault(slot, []).append(f)
        for j, base in ((1, 0), (2, 4), (3, 8), (4, 16), (5, 24)):
            k = 0
            for ks in range(2):
                for h in range(2):
                    put(base + k, (lambda j=j, ks=ks, h=h, c=c: wread(c, j, ks, h))); k += 1
        if c < 6:
            def bar(c=c):
                t.q = []
                a("s_waitcnt vmcnt(0) lgkmcnt(0)" if c == 0 else "s_waitcnt lgkmcnt(0)")
                if opt.get("xst"): stamp(f"xa{c}")
                a("s_barrier")
                if opt.get("xst"): stamp(f"xp{c}")
            put(BAR, bar)
        elif c == 6:
            flag_check(put, BAR, FL_YC7, "c7")
            put(BAR, lambda: t.issue(f"ds_write_b32 v14, v13 offset:{FL_XS0}", ("flag",)))
        else:
            CSB = opt.get("csb", 36)
            flag_check(put, CSB, FL_YCS, "cs")
            put(CSB + 1, lambda: t.issue(f"ds_write_b32 v14, v13 offset:{FL_XDONE}", ("flag",)))
            k = CSB + 1
            for i in range(4):
                put(k, lambda i=i: t.issue(f"ds_read_b32 v{MUR+i}, v{V_MU} offset:{64*i}", ("mu",))); k += 1
            for jj in range(3):
                for gu in range(2):
                    put(k, lambda jj=jj, gu=gu: t.issue(f"ds_read_b128 {vr(CSR+8*jj+4*gu,4)}, v{V_CS} offset:{384*gu+64*jj}", ("cs", jj))); k += 1
            assert k <= 48
        if c < 7:
            for k, f in enumerate(first_reads(c + 1)): put(BAR + 1 + k, f)
        m = 0
        for j in range(6):
            for i in range(4):
                for ks in range(2):
                    need = {("w", c, j, ks, 0), ("w", c, j, ks, 1), ("x", c, i, ks)}
                    if ks == 0 and opt.get("pairwait", 1): need |= {("w", c, j, 1, 0), ("w", c, j, 1, 1), ("x", c, i, 1)}
                    t.need(need)
                    cc = ACC + 16 * j + 4 * i
                    a(f"v_mfma_f32_16x16x32_bf16 {vr(cc,4)}, {vr(WF + 8*(j%3) + 4*ks, 4)}, {vr(XF + 32*(c&1) + 8*i + 4*ks, 4)}, {'0' if (c == 0 and ks == 0) else vr(cc,4)}")
                    for f in fill.get(m, []): f()
                    m += 1
    a("s_setprio 3")
    stamp("G1end")
    def hstore(jj, ip):
        a(f"buffer_store_dwordx4 {vr(16+8*jj+4*ip,4)}, v{V_H0+ip}, {srd(S_WS)}, s{HSO+jj} offen offset:{512*jj} sc1")
    LATE = opt.get("latest", 0)
    for jj in range(3):
        t.need({("cs", jj)})
        for ip in range(2):
            d = 16 + 8 * jj + 4 * ip
            for b in range(2):
                i = 2 * ip + b
                g = ACC + 32 * jj + 4 * i; u = g + 16
                mu = f"{vr(MUR + 2*ip, 2)}"
                sel = f"op_sel:[{b},0,0] op_sel_hi:[{b},1,1] neg_lo:[1,0,0] neg_hi:[1,0,0]"
                for hh in range(2):
                    a(f"v_pk_fma_f32 {vr(g+2*hh,2)}, {mu}, {vr(CSR+8*jj+2*hh,2)}, {vr(g+2*hh,2)} {sel}")
                    a(f"v_pk_fma_f32 {vr(u+2*hh,2)}, {mu}, {vr(CSR+8*jj+4+2*hh,2)}, {vr(u+2*hh,2)} {sel}")
                a(f"v_pk_mul_f32 {vr(g,2)}, {vr(g,2)}, {vr(u,2)}\nv_pk_mul_f32 {vr(g+2,2)}, {vr(g+2,2)}, {vr(u+2,2)}")
                if (jj, ip, b) == (2, 1, 1): lds_set(FL_XEPI)
                a(f"v_cvt_pk_bf16_f32 v{d+2*b}, v{g}, v{g+1}\nv_cvt_pk_bf16_f32 v{d+2*b+1}, v{g+2}, v{g+3}")
            a(f"s_nop 1\nv_permlane16_swap_b32 v{d}, v{d+2}\nv_permlane16_swap_b32 v{d+1}, v{d+3}")
            if not LATE: hstore(jj, ip)
    stamp("epi")
    if LATE:
        for jj in range(3):
            for ip in range(2): hstore(jj, ip)
    stamp("hstored")
    PH, DB, HF, A2 = 144, 112, 16, 224
    V_RO, V_RP, V_Y, V_X, V_O, V_S = 80, 81, 82, 84, 83, 88
    lds_wait(15, FL_XDONE, 3)
    NPRE = opt.get("npre", 0)
    xvm = VmTracker(a)
    xvm.q.append("hs")
    def POS(i): return i
    def wd_dma(i, ldsbase_s, ldsoff, tag):
        if opt.get("nowd") and i != 20: return
        a(f"s_add_u32 m0, s{ldsbase_s}, {ldsoff}\ns_lshl_b32 s61, s{ST+POS(i)}, 5")
        xvm.issue(f"buffer_load_dwordx4 v8, {srd(S_WD)}, s61 offen lds", tag)
        a("s_add_u32 m0, m0, 1024\ns_nop 0")
        xvm.issue(f"buffer_load_dwordx4 v9, {srd(S_WD)}, s61 offen lds", tag)
    todo = [p for p in range(6) if PLACE[1+p] == "X"] + [21] + list(range(11 if YA else 6, 21))
    def wd_next():
        i = todo.pop(0)
        if i == 21:
            a(f"s_cmp_lg_u32 s{KH}, 0\ns_cbranch_scc1 L_xno21")
            nq = len(xvm.q)
            wd_dma(21, 73, L_E + 8192, "wd")
            del xvm.q[nq:]
            a("L_xno21:")
        elif i < 5: wd_dma(i, 74, 2 * STAGE + i * 4096, "xb")
        elif i == 5: wd_dma(i, 43, L_E, "wd")
        else: wd_dma(i, 74, ((i - 6) // 5) * STAGE + ((i - 6) % 5) * 4096, "wd")
    def wdread(dst, dt, h, off, tag):
        t.issue(f"ds_read_b64_tr_b16 {vr(dst + 4*dt + 2*h, 2)}, v{4+dt} offset:{off + 512*h}", tag)
    t = LgkmTracker(a)
    def prehold():
        for i in range(5):
            for dt in range(4):
                for h in range(2): wdread(PH + 16 * i, dt, h, 4096 * i, ("p",))
        t.drain()
        lds_set(FL_XPRE)
    for i in range(NPRE): wd_next()
    if ALLS:
        lds_wait(15, FL_YFL, 3)
        prehold()
        lds_wait(12, FL_XPRE, 3)
    xvm.need("hs")
    stamp("hflag")
    a("s_cmp_gt_u32 s66, 14\ns_cbranch_scc1 L_xsig1")
    ssignal(65)
    a("L_xsig1:\ns_sub_u32 s66, s66, 14\ns_cmp_gt_u32 s66, 14\ns_cbranch_scc1 L_xsig2\ns_add_u32 s66, s65, 128")
    ssignal(66)
    a("L_xsig2:")
    a(f"s_setprio {opt.get('xprio2', 3)}")
    if not ALLS:
        while todo[0] != opt.get("xa", 10): wd_next()
        if "X" in PLACE[1:6]:
            xvm.need("xb"); lds_set(FL_XA)
        while todo[0] != opt.get("phat", 13): wd_next()
        if "X" in PLACE[1:6]: lds_wait(12, FL_XA, 3)
        lds_wait(15, FL_YB0, 3)
        stamp("b0seen")
        prehold()
        while todo[0] != 16: wd_next()
        lds_wait(12, FL_XPRE, 3)
    while len(todo) > opt.get("pollat", 4): wd_next()
    a(f"s_mov_b32 s58, 0\ns_atomic_add s58, s[{S_WS}:{S_WS+1}], s67 glc")
    while todo: wd_next()
    stamp("prepoll")
    spoll_check(67, 15, sleep=opt.get("hsleep", 1))
    stamp("hready")
    HD = opt.get("hd", 5)
    assert HD <= 7
    def hreg(i): return HF + 8 * (i % 8)
    def hload(i, ts):
        xvm.issue(f"buffer_load_dwordx4 {vr(hreg(i)+4*ts,4)}, v{10+ts}, {srd(S_WS)}, s{ST+POS(i)} offen sc1", ("h", i))
    for i in range(HD):
        for ts in range(2): hload(i, ts)
    a(f"s_lshl_b32 s60, s3, 12\ns_add_u32 s60, s60, {L_RED}\nv_lshl_add_u32 v{V_RO}, v0, 4, s60\ns_xor_b32 s60, s3, 2\ns_lshl_b32 s60, s60, 12\ns_add_u32 s60, s60, {L_RED}\nv_lshl_add_u32 v{V_RP}, v0, 4, s60")
    a(f"v_lshrrev_b32 v3, 2, v1\nv_lshl_add_u32 v3, v2, 2, v3\nv_bfe_u32 v{V_Y}, v3, 1, 2\ns_and_b32 s61, s75, 3\nv_xor_b32 v{V_Y}, s61, v{V_Y}\nv_lshlrev_b32 v{V_Y}, 4, v{V_Y}\nv_lshl_add_u32 v{V_Y}, v3, 7, v{V_Y}")
    a(f"v_bfe_u32 v3, v1, 1, 1\nv_lshl_add_u32 v{V_Y}, v3, 6, v{V_Y}\nv_and_b32 v3, 1, v1\nv_lshl_add_u32 v{V_Y}, v3, 3, v{V_Y}\nv_add_u32 v{V_Y}, {L_YL}, v{V_Y}")
    a(f"s_lshl_b32 s60, s61, 7\ns_add_u32 s60, s60, {L_ST2}\nv_lshl_add_u32 v3, v1, 3, s60\nds_read_b64 {vr(V_S,2)}, v3")
    a(f"v_lshrrev_b32 v{V_O}, 1, v2\nv_lshrrev_b32 v{V_X}, 1, v1\nv_xor_b32 v{V_X}, v{V_X}, v{V_O}\nv_lshlrev_b32 v{V_X}, 4, v{V_X}\nv_lshl_add_u32 v{V_X}, v1, 7, v{V_X}\nv_and_b32 v92, 1, v2\nv_lshl_add_u32 v{V_X}, v92, 3, v{V_X}")
    a(f"s_lshl_b32 s61, s61, 11\ns_add_u32 s61, s61, {L_XL}\nv_add_u32 v{V_X}, s61, v{V_X}\nv_xor_b32 v{V_X+1}, 32, v{V_X}\nv_xor_b32 v{V_X+2}, 64, v{V_X}\nv_xor_b32 v{V_X+3}, 96, v{V_X}")
    a(f"s_lshl_b32 s60, s75, 14\ns_lshl_b32 s61, s{S_DB2}, 7\ns_add_u32 s60, s60, s61")
    a(f"v_lshl_add_u32 v{V_O}, v{V_O}, 4, s60\nv_lshl_add_u32 v{V_O}, v92, 5, v{V_O}\nv_lshl_add_u32 v{V_O}, v1, 10, v{V_O}")
    a("s_waitcnt lgkmcnt(0)")
    a(f"v_mul_f32 v{V_S+3}, v{V_S+1}, v{V_S+1}\nv_mul_f32 v{V_S+2}, v{V_S+3}, v{V_S+1}\nv_mul_f32 v{V_S+3}, 0xbfb8aa3b, v{V_S+3}")
    a(f"s_setprio {opt.get('g2prio', 1)}")
    xvm.need("wd")
    t = LgkmTracker(a)
    t.issue(f"ds_write_b32 v14, v13 offset:{FL_XDMA}", ("flag",))
    def slot(i):
        if i == 5: return ("E", 0)
        if i < 16: return ("R01", ((i - 6) // 5) * STAGE + ((i - 6) % 5) * 4096)
        if i < 21: return ("R2", (i - 16) * 4096)
        return ("E2", 0)
    region = ["R2a"]
    def step_reads(i):
        reg_, off = slot(i)
        out = []
        if reg_ != region[0]:
            op = {"E": "v_add_u32 v{r}, s71, v{r}", "R01": "v_subrev_u32 v{r}, s70, v{r}", "R2": "v_add_u32 v{r}, " + str(2*STAGE) + ", v{r}", "E2": "v_add_u32 v{r}, s72, v{r}"}[reg_]
            region[0] = reg_
            pre = [op.format(r=4 + q) for q in range(4)]
        else:
            pre = [None] * 4
        for dt in range(4):
            for h in range(2):
                def f(dt=dt, h=h):
                    if h == 0 and pre[dt]: a(pre[dt])
                    wdread(DB + 16 * (i & 1), dt, h, off, ("d", i, dt))
                out.append(f)
        return out
    XR = 96
    for i in range(22):
        fill = {}
        def put(slot_, f): fill.setdefault(slot_, []).append(f)
        if 5 <= i + 1 < 22:
            for k, f in enumerate(step_reads(i + 1)): put(k, f)
        if i + HD < 22:
            put(1, lambda i=i: hload(i + HD, 0)); put(5, lambda i=i: hload(i + HD, 1))
        if i == 2 and ALLS: flag_check(put, 7, FL_YB0, "yb0")
        if i == 3: flag_check(put, 7, FL_XDMA, "xdma")
        if i == 21 - HD - opt.get("yearly", 0): put(6, lambda: t.issue(f"ds_write_b32 v14, v13 offset:{FL_XHI}", ("flag",)))
        if i == 11: put(7, lambda: t.issue(f"ds_write_b32 v14, v13 offset:{FL_XMID}", ("flag",)))
        if i == 21:
            put(0, lambda: t.issue(f"ds_read2_b32 v[92:93], v15 offset0:{FL_XMID//4} offset1:{FL_YXL//4}", ("flag2",)))
            def f1():
                t.drain(); a("v_and_b32 v3, v92, v93")
            put(5, f1)
            put(6, lambda: a("v_cmp_eq_u32 vcc, 0, v3"))
            put(7, lambda: a("s_cbranch_vccnz L_slow_fin\nL_back_fin:"))
        m = 0
        for dp in range(2):
            for ts in range(2):
                for dt in (2 * dp, 2 * dp + 1):
                    if m == 0: xvm.need(("h", i))
                    if m == 0 and i in opt.get("gst", []): stamp(f"g{i}"); t.q = []
                    if i >= 5: t.need({("d", i, 2 * dp), ("d", i, 2 * dp + 1)})
                    A = (PH + 16 * i if i < 5 else DB + 16 * (i & 1)) + 4 * dt
                    c = A2 + 16 * ts + 4 * dt
                    a(f"v_mfma_f32_16x16x32_bf16 {vr(c,4)}, {vr(A,4)}, {vr(hreg(i)+4*ts,4)}, {'0' if i == 0 else vr(c,4)}")
                    for f in fill.get(m, []): f()
                    m += 1
    stamp("G2end")
    for dt in range(4): a(f"ds_read_b64 {vr(XR+2*dt,2)}, v{V_X+dt}")
    XV, PV, OV = 16, 32, 48
    a(f"s_cmp_eq_u32 s{KH}, 0\ns_cbranch_scc1 L_xsend0")
    for kh in (1, 0):
        if kh == 0: a("L_xsend0:")
        a("s_nop 1")
        for i in range(4): a(f"ds_write_b128 v{V_RO}, {vr(A2+16*(1-kh)+4*i,4)} offset:{1024*i}")
        a("s_waitcnt lgkmcnt(4)")
        for k in range(8):
            a(f"v_lshlrev_b32 v{XV+2*k}, 16, v{XR+k}\nv_and_b32 v{XV+2*k+1}, 0xffff0000, v{XR+k}")
        for k in range(8):
            a(f"v_pk_add_f32 {vr(PV+2*k,2)}, {vr(XV+2*k,2)}, {vr(V_S,2)} op_sel_hi:[1,0] neg_lo:[0,1] neg_hi:[0,1]")
        for k in range(8):
            a(f"v_pk_mul_f32 {vr(PV+2*k,2)}, {vr(PV+2*k,2)}, {vr(V_S+2,2)} op_sel_hi:[1,0]")
        a("s_waitcnt lgkmcnt(0)\ns_barrier")
        for dt in range(4): a(f"ds_read_b128 {vr(OV+4*dt,4)}, v{V_RP} offset:{1024*dt}")
        for dt in range(4): a(f"ds_read_b64_tr_b16 {vr(XR+2*dt,2)}, v{V_Y} offset:{2048*dt}")
        for dt in range(4):
            a(f"s_waitcnt lgkmcnt({7-dt})")
            for hh in range(2):
                a(f"v_pk_add_f32 {vr(OV+4*dt+2*hh,2)}, {vr(OV+4*dt+2*hh,2)}, {vr(A2+16*kh+4*dt+2*hh,2)}")
        if kh == 1: a("s_branch L_xsent")
    a("L_xsent:")
    stamp("Z1")
    EV, YV = 64, 112
    for pr in range(2):
        ks = range(4 * pr, 4 * pr + 4)
        for k in ks: a(f"v_pk_mul_f32 {vr(EV+2*k,2)}, {vr(OV+2*k,2)}, {vr(V_S+2,2)} op_sel:[0,1] op_sel_hi:[1,1]")
        for k in ks: a(f"v_exp_f32 v{EV+2*k}, v{EV+2*k}\nv_exp_f32 v{EV+2*k+1}, v{EV+2*k+1}")
        if pr == 0: a("s_waitcnt lgkmcnt(0)")
        for k in ks: a(f"v_pk_mul_f32 {vr(OV+2*k,2)}, {vr(OV+2*k,2)}, {vr(PV+2*k,2)}")
        for k in ks: a(f"v_pk_add_f32 {vr(EV+2*k,2)}, {vr(EV+2*k,2)}, 1.0 op_sel_hi:[1,0]")
        for k in ks: a(f"v_rcp_f32 v{EV+2*k}, v{EV+2*k}\nv_rcp_f32 v{EV+2*k+1}, v{EV+2*k+1}")
        for k in ks: a(f"v_lshlrev_b32 v{YV+2*k}, 16, v{XR+k}\nv_and_b32 v{YV+2*k+1}, 0xffff0000, v{XR+k}")
        for k in ks: a(f"v_pk_mul_f32 {vr(OV+2*k,2)}, {vr(OV+2*k,2)}, {vr(EV+2*k,2)}")
        for k in ks: a(f"v_pk_fma_f32 {vr(OV+2*k,2)}, {vr(OV+2*k,2)}, {vr(YV+2*k,2)}, {vr(XV+2*k,2)}")
        d = 104 + 4 * pr
        for k in ks: a(f"v_cvt_pk_bf16_f32 v{104+k}, v{OV+2*k}, v{OV+2*k+1}")
        a(f"s_nop 1\nv_permlane16_swap_b32 v{d}, v{d+2}\nv_permlane16_swap_b32 v{d+1}, v{d+3}")
        a(f"buffer_store_dwordx4 {vr(d,4)}, v{V_O}, {srd(S_OUT)}, 0 offen offset:{64*pr} {opt.get('outaux', '')}")
    if prof:
        a("s_waitcnt vmcnt(0)")
        stamp("end")
        dump_stamps(0)
    a("s_endpgm")
    for off, name in slow:
        a(f"L_slow_{name}:")
        lds_wait(15, off, 3)
        a(f"s_branch L_back_{name}")
    a("L_slow_fin:")
    lds_wait(15, FL_XMID, 3)
    lds_wait(15, FL_YXL, 3)
    a("s_branch L_back_fin")
    a("L_end:")
    return a.text()


def full_text(opt=None):
    ref = open(f"cdna_kernels/{NAME}.s.ref").read().split("\n")
    head = [l for l in ref if l.startswith(";") and "@launch" not in l and not l.startswith("; Override") and not l.startswith("; grid=")]
    out = "\n".join(head) + "\n"
    out += f"; @launch grid=(256,1,1) block=(512,1,1) lds={LDS_BYTES}\n"
    out += f""".amdgcn_target "amdgcn-amd-amdhsa--gfx950"
.text
.globl {NAME}_kernel
.p2align 8
.type {NAME}_kernel,@function
{NAME}_kernel:
"""
    out += gen(opt)
    out += f"""    s_endpgm
.section .rodata,"a"
.p2align 6
.amdhsa_kernel {NAME}_kernel
  .amdhsa_next_free_vgpr 256
  .amdhsa_next_free_sgpr 102
  .amdhsa_accum_offset 256
  .amdhsa_group_segment_fixed_size 0
  .amdhsa_kernarg_size 104
  .amdhsa_user_sgpr_count 2
  .amdhsa_user_sgpr_kernarg_segment_ptr 1
  .amdhsa_system_sgpr_workgroup_id_x 1
.end_amdhsa_kernel
"""
    return out


if __name__ == "__main__":
    import hazard, json
    opt = json.loads(sys.argv[2]) if len(sys.argv) > 2 else {}
    txt = full_text(opt)
    bad = hazard.check(txt)
    for b in bad: print("HAZARD", b)
    path = sys.argv[1] if len(sys.argv) > 1 else f"cdna_kernels/{NAME}.s"
    open(path, "w").write(txt)
    print("wrote", path, len(txt), "bytes")
```

```python
import sys
sys.path.insert(0, "work")
from asmlib import *

NAME = "recurrent_scan__ssm_conv_h3__glu_gated_bilinear__prompt"

C_X, C_ST, C_H, C_Y, C_CS = 0, 1024, 3072, 11264, 19456
WS_CSP = 0x8000
WS_STATS = 0x38000
WS_PROF = 0x40000
WS_KVT = 0x100000
WS_YT = 0x300000
WS_H = 0x500000
WS_SIZE = 0xB00000
STAGE = 40960
GOFF, UOFF = 16384, 28672
L_KC = 122880
L_U = 139520
USTR = 4608
L_CS = 148736
L_MU = 149504
L_FLG = 150016
L_E = 150528
L_KVS = L_E
L_ST2 = 162816
L_YL = L_KC
L_XL = L_KC + 8192
L_RED = 0
LDS_BYTES = 163840
(FL_XDONE, FL_XPRE, FL_XDMA, FL_YRDY, FL_YB0, FL_YKA, FL_YKB, FL_YFIN,
 FL_XEPI, FL_XMID, FL_YC7, FL_YCS, FL_YXL, FL_XHI, FL_XS0, FL_YFL, FL_XA, FL_XC) = range(0, 288, 16)
S_Q, S_K, S_V, S_SK, S_SM, S_WG, S_WU, S_WD, S_OUT, S_DBG, S_WS, S_SD = 4, 8, 12, 16, 20, 24, 28, 32, 36, 40, 44, 48
S_XCD, S_J, S_MI, S_FI, S_ROT, S_TT2, S_DB2, S_R2 = 50, 51, 52, 53, 54, 55, 56, 57
SPIN_MAX = 200000
STAMP_NAMES = None


def srdw(a, r, size):
    a(f"s_mov_b32 s{r+2}, {size}\ns_mov_b32 s{r+3}, 0x20000")


def srd(r):
    return f"s[{r}:{r+3}]"


def gen(opt=None):
    opt = opt or {}
    prof = opt.get("prof", 0)
    a = Asm()
    PLACE = opt.get("place", "YYYYXXX")
    ALLS = all(ch == "S" for ch in PLACE[1:6])
    YA = opt.get("ya", 1 if ALLS else 0)
    names = {0: [], 1: []}
    role_now = [1]
    skip = set(opt.get("nostamp", []))
    only = opt.get("stamps")

    def stamp(name):
        if prof and name not in skip and (only is None or name in only or name == "end"):
            k = len(names[role_now[0]]) + 1
            assert k < 24
            names[role_now[0]].append(name)
            a(f"s_memrealtime s[76:77]\ns_waitcnt lgkmcnt(0)\ns_mov_b32 s{78+k}, s76")
    global STAMP_NAMES
    STAMP_NAMES = names

    def dump_stamps(role):
        if not prof: return
        amp = opt.get("amp")
        if amp:
            if amp[0] == role:
                k = names[role].index(amp[1]) + 1
                lab = a.label("amp"); out = a.label("ampo")
                a(f"s_and_b32 s60, s3, 3\ns_cmp_lg_u32 s60, 0\ns_cbranch_scc1 {out}\ns_cmp_lg_u32 s2, {amp[3]}\ns_cbranch_scc1 {out}")
                a(f"s_sub_u32 s60, s{78+k}, s78\ns_min_u32 s60, s60, 10000\ns_mul_i32 s60, s60, {amp[2]}\ns_add_u32 s60, s60, {amp[4] if len(amp) > 4 else 0}")
                a(f"{lab}:\ns_memrealtime s[76:77]\ns_waitcnt lgkmcnt(0)\ns_sub_u32 s61, s76, s78\ns_cmp_lt_u32 s61, s60\ns_cbranch_scc1 {lab}\n{out}:")
            return
        lab = a.label("nodump")
        a(f"s_and_b32 s60, s3, 3\ns_cmp_lg_u32 s60, {opt.get('profwave', 0)}\ns_cbranch_scc1 {lab}")
        a(f"s_lshl_b32 s60, s2, 8\ns_add_u32 s60, s60, {WS_PROF + 128*role}\nv_mov_b32 v3, 0\ns_mov_b64 exec, 1")
        for g in range(6):
            for i in range(4):
                a(f"v_mov_b32 v{16+4*g+i}, s{78+4*g+i}")
            a(f"buffer_store_dwordx4 v[{16+4*g}:{19+4*g}], v3, {srd(S_WS)}, s60 offen offset:{16*g}")
        a(f"{lab}:")

    def lds_set(off):
        a(f"ds_write_b32 v14, v13 offset:{off}")

    def lds_wait(addr_v, off, tmp, sleep=0):
        lab = a.label("lw"); out = a.label("lwo"); ent = a.label("lwe")
        a("s_mov_b32 s60, 0")
        if sleep: a(f"s_branch {ent}")
        a(f"{lab}:")
        if sleep: a(f"s_sleep {sleep}\n{ent}:")
        a(f"ds_read_b32 v{tmp}, v{addr_v} offset:{off}\ns_add_u32 s60, s60, 1\ns_cmp_gt_u32 s60, {SPIN_MAX*8}\ns_cbranch_scc1 {out}")
        a(f"s_waitcnt lgkmcnt(0)\nv_cmp_eq_u32 vcc, 0, v{tmp}\ns_cbranch_vccnz {lab}")
        a(f"{out}:\ns_waitcnt lgkmcnt(0)")

    def flag_regs(wave_s):
        a(f"s_lshl2_add_u32 s60, s{wave_s}, {L_FLG}\nv_mov_b32 v14, s60\ns_xor_b32 s60, s60, 4\nv_mov_b32 v12, s60")
        a(f"v_and_b32 v15, 3, v0\nv_lshlrev_b32 v15, 2, v15\nv_add_u32 v15, {L_FLG}, v15\nv_mov_b32 v13, 1")

    def ssignal(off_s):
        a(f"s_atomic_add s59, s[{S_WS}:{S_WS+1}], s{off_s}")

    def spoll_issue(off_s):
        a(f"s_waitcnt lgkmcnt(0)\ns_mov_b32 s58, 0\ns_atomic_add s58, s[{S_WS}:{S_WS+1}], s{off_s} glc")

    def spoll_check(off_s, target, sleep=2):
        lab = a.label("sp"); out = a.label("spo")
        a(f"s_mov_b32 vcc_lo, 0\n{lab}:\ns_waitcnt lgkmcnt(0)\ns_cmp_ge_u32 s58, {target}\ns_cbranch_scc1 {out}")
        if sleep: a(f"s_sleep {sleep}")
        a(f"s_mov_b32 s58, 0\ns_atomic_add s58, s[{S_WS}:{S_WS+1}], s{off_s} glc")
        a(f"s_add_u32 vcc_lo, vcc_lo, 1\ns_cmp_lt_u32 vcc_lo, {SPIN_MAX}\ns_cbranch_scc1 {lab}\ns_waitcnt lgkmcnt(0)")
        a(f"{out}:")

    V_RO, V_RP, V_Y, V_O, V_X, V_S, XR, XV, PV, OV, EV, YV = 80, 81, 82, 83, 84, 88, 96, 144, 152, 160, 176, 184
    def final_addr(t16_s, half):
        a(f"s_and_b32 s61, s{t16_s}, 3\ns_mul_i32 s60, s61, 6144\ns_add_u32 s60, s60, {L_RED}\nv_lshl_add_u32 v{V_RP}, v0, 4, s60")
        a(f"v_lshrrev_b32 v3, 2, v1\nv_lshl_add_u32 v3, v2, 2, v3\nv_bfe_u32 v{V_Y}, v3, 1, 2\nv_xor_b32 v{V_Y}, s61, v{V_Y}\nv_lshlrev_b32 v{V_Y}, 4, v{V_Y}\nv_lshl_add_u32 v{V_Y}, v3, 7, v{V_Y}")
        a(f"v_bfe_u32 v3, v1, 1, 1\nv_lshl_add_u32 v{V_Y}, v3, 6, v{V_Y}\nv_and_b32 v3, 1, v1\nv_lshl_add_u32 v{V_Y}, v3, 3, v{V_Y}\nv_add_u32 v{V_Y}, {L_YL + 4096*half}, v{V_Y}")
        a(f"s_lshl_b32 s60, s61, 7\ns_add_u32 s60, s60, {L_ST2}\nv_lshl_add_u32 v3, v1, 3, s60\nds_read_b64 {vr(V_S,2)}, v3")
        a(f"v_lshrrev_b32 v{V_O}, 1, v2\nv_lshrrev_b32 v{V_X}, 1, v1\nv_xor_b32 v{V_X}, v{V_X}, v{V_O}\nv_lshlrev_b32 v{V_X}, 4, v{V_X}\nv_lshl_add_u32 v{V_X}, v1, 7, v{V_X}\nv_and_b32 v92, 1, v2\nv_lshl_add_u32 v{V_X}, v92, 3, v{V_X}")
        a(f"s_lshl_b32 s61, s61, 11\ns_add_u32 s61, s61, {L_XL}\nv_add_u32 v{V_X}, s61, v{V_X}")
        if half: a(f"v_xor_b32 v{V_X}, 64, v{V_X}")
        a(f"v_xor_b32 v{V_X+1}, 32, v{V_X}")
        a(f"s_lshl_b32 s60, s{t16_s}, 14\ns_lshl_b32 s61, s{S_DB2}, 7\ns_add_u32 s60, s60, s61\ns_add_u32 s60, s60, {64*half}")
        if not opt.get("ostage", 1):
            a(f"v_lshl_add_u32 v{V_O}, v{V_O}, 4, s60\nv_lshl_add_u32 v{V_O}, v92, 5, v{V_O}\nv_lshl_add_u32 v{V_O}, v1, 10, v{V_O}")
        else:
            a(f"v_lshl_add_u32 v92, v92, 1, v{V_O}\nv_bfe_u32 v3, v1, 1, 2\nv_xor_b32 v92, v92, v3\nv_lshlrev_b32 v92, 4, v92\nv_lshl_add_u32 v92, v1, 6, v92")
            a(f"s_lshl_b32 s61, s3, 10\ns_add_u32 s61, s61, {L_RED + 24576}\nv_add_u32 v86, s61, v92\nv_lshl_add_u32 v87, v0, 4, s61")
            a(f"v_bfe_u32 v3, v0, 3, 2\nv_xor_b32 v3, v3, v0\nv_and_b32 v3, 3, v3\nv_lshl_add_u32 v{V_O}, v3, 4, s60\nv_lshrrev_b32 v3, 2, v0\nv_lshl_add_u32 v{V_O}, v3, 10, v{V_O}")
        a("s_waitcnt lgkmcnt(0)")
        a(f"v_mul_f32 v{V_S+3}, v{V_S+1}, v{V_S+1}\nv_mul_f32 v{V_S+2}, v{V_S+3}, v{V_S+1}\nv_mul_f32 v{V_S+3}, 0xbfb8aa3b, v{V_S+3}")
    def final_xp():
        out = []
        for k in range(4):
            out += [f"v_lshlrev_b32 v{XV+2*k}, 16, v{XR+k}", f"v_and_b32 v{XV+2*k+1}, 0xffff0000, v{XR+k}"]
        out += [f"v_sub_f32 v{PV+k}, v{XV+k}, v{V_S}" for k in range(8)]
        out += [f"v_mul_f32 v{PV+k}, v{PV+k}, v{V_S+2}" for k in range(8)]
        return out

    a("L_start:")
    if prof: a("s_memrealtime s[78:79]")
    a(f"s_load_dwordx2 s[{S_K}:{S_K+1}], s[0:1], 8\ns_load_dwordx2 s[{S_WU}:{S_WU+1}], s[0:1], 64\ns_load_dwordx2 s[{S_V}:{S_V+1}], s[0:1], 16")
    a(f"s_load_dwordx2 s[{S_SK}:{S_SK+1}], s[0:1], 24\ns_load_dwordx2 s[{S_Q}:{S_Q+1}], s[0:1], 0\ns_load_dwordx2 s[{S_WG}:{S_WG+1}], s[0:1], 56")
    a("s_cmp_ge_u32 s2, 256\ns_cbranch_scc1 L_end")
    a("v_lshrrev_b32 v1, 6, v0")
    a(f"s_and_b32 s{S_XCD}, s2, 7\ns_lshr_b32 s{S_J}, s2, 3")
    a("v_readfirstlane_b32 s3, v1")
    a(f"s_and_b32 s58, s2, 1\ns_and_b32 s59, s{S_J}, 3\ns_lshr_b32 s60, s2, 5\ns_lshr_b32 s61, s{S_XCD}, 1")
    a(f"s_lshl2_add_u32 s{S_MI}, s61, s59\ns_lshl2_add_u32 s{S_TT2}, s{S_XCD}, s59\ns_xor_b32 s{S_DB2}, s60, 4")
    a(f"s_lshl1_add_u32 s{S_R2}, s59, s60\ns_and_b32 s61, s61, 1\ns_add_u32 s{S_ROT}, s{S_R2}, s61\ns_and_b32 s{S_ROT}, s{S_ROT}, 7")
    a(f"s_lshr_b32 s59, s59, 1\ns_xor_b32 s59, s59, s58\ns_add_u32 s59, s59, 14\ns_mul_i32 s58, s58, 7\ns_add_u32 s58, s58, s60\ns_cmp_eq_u32 s60, 7\ns_cselect_b32 s{S_FI}, s59, s58")
    srdw(a, S_Q, 2097152)
    a("s_cmp_lt_u32 s3, 4\ns_cbranch_scc0 L_Y")

    def common_late():
        a(f"s_load_dwordx2 s[{S_WS}:{S_WS+1}], s[0:1], 96")
        a(f"s_mul_i32 s{S_R2}, s{S_R2}, 11\ns_lshr_b32 s{S_R2}, s{S_R2}, 2\ns_mov_b32 s59, 1")
        srdw(a, S_WS, WS_SIZE)
    role_now[0] = 0
    xvm = VmTracker(a)
    if opt.get("codepf", 1):
        SL = opt.get("_slice", 520)
        a(f"s_getpc_b64 s[60:61]\nL_pc:\ns_mul_i32 s58, s{S_J}, {SL}\ns_add_u32 s60, s60, s58\ns_addc_u32 s61, s61, 0")
        a(f"v_min_u32 v2, {SL//8}, v0\nv_lshlrev_b32 v2, 3, v2\nv_mov_b32 v3, 0\nv_lshl_add_u64 v[2:3], v[2:3], 0, s[60:61]")
        xvm.issue("global_load_dword v11, v[2:3], off", "pf")
    a("v_and_b32 v0, 63, v0")
    a(f"s_mov_b64 s[{S_K+2}:{S_K+3}], s[{S_Q+2}:{S_Q+3}]\ns_mov_b64 s[{S_V+2}:{S_V+3}], s[{S_Q+2}:{S_Q+3}]\ns_movk_i32 s{S_SK+2}, 4096\ns_mov_b32 s{S_SK+3}, s{S_Q+3}")
    a(f"s_lshl2_add_u32 s60, s{S_TT2}, s3\ns_lshl_b32 s61, s60, 14\ns_lshl_b32 s62, s{S_DB2}, 7\ns_add_u32 s61, s61, s62")
    a("v_and_b32 v1, 31, v0\nv_lshrrev_b32 v2, 5, v0\nv_lshlrev_b32 v3, 13, v2\nv_lshl_add_u32 v3, v1, 2, v3\nv_add_u32 v4, s61, v3\nv_subrev_u32 v5, 3072, v4")
    a(f"s_lshl_b32 s62, s{S_DB2}, 9\nv_lshl_add_u32 v6, v1, 4, s62")
    a(f"s_lshl4_add_u32 s63, s{S_MI}, s{S_FI}\ns_lshl2_add_u32 s63, s63, s3\ns_lshl_b32 s64, s63, 11\nv_lshlrev_b32 v7, 10, v2\nv_lshl_add_u32 v7, v1, 4, v7\nv_add_u32 v7, s64, v7")
    a("s_waitcnt lgkmcnt(0)")
    stamp("karg")
    def ld_stats():
        xvm.issue(f"buffer_load_dwordx4 v[40:43], v7, {srd(S_Q)}, 0 offen", "s")
        xvm.issue(f"buffer_load_dwordx4 v[44:47], v7, {srd(S_Q)}, 0 offen offset:512", "s")
    for i in range(3): xvm.issue(f"buffer_load_dword v{16+i}, v5, {srd(S_K)}, 0 offen offset:{1024*i}", "k")
    for i in range(8): xvm.issue(f"buffer_load_dword v{19+i}, v4, {srd(S_K)}, {'0' if i < 4 else 's'+str(S_SK+2)} offen offset:{1024*(i%4)}", "k")
    xvm.issue(f"buffer_load_dwordx4 v[36:39], v6, {srd(S_SK)}, 0 offen", "k")
    for i in range(8): xvm.issue(f"buffer_load_dword v{28+i}, v4, {srd(S_V)}, {'0' if i < 4 else 's'+str(S_SK+2)} offen offset:{1024*(i%4)}", "v")
    ld_stats()
    a("s_branch L_X2")

    a("L_Y:")
    role_now[0] = 1
    YW, XLO, GLO, CIX, CH, DH, DCH = 62, 63, 64, 65, 68, 69, 70
    a(f"v_and_b32 v0, 63, v0\ns_sub_u32 s{YW}, s3, 4")
    srdw(a, S_WG, 1409024)
    srdw(a, S_WU, 1409024)
    a(f"s_mul_i32 s63, s{YW}, 44032\ns_mul_i32 s64, s{S_FI}, 192\ns_add_u32 s63, s63, s64\ns_movk_i32 s65, 2752")
    a(f"s_sub_u32 s64, s65, s64\ns_lshr_b32 s64, s64, 4\ns_cmp_eq_u32 s{S_FI}, 15\ns_cselect_b32 s64, 0, s64")
    a("v_mov_b32 v11, 0x80000000")
    for i in range(3):
        a(f"v_add_u32 v1, {64*i}, v0\nv_mul_u32_u24 v2, 43691, v1\nv_lshrrev_b32 v2, 19, v2")
        a("v_mul_u32_u24 v3, 12, v2\nv_sub_u32 v1, v1, v3")
        a("v_lshrrev_b32 v3, 2, v2\nv_and_b32 v3, 2, v3\nv_xor_b32 v1, v1, v3")
        a("v_cmp_gt_u32 vcc, s64, v1\nv_mul_u32_u24 v2, s65, v2\nv_lshl_add_u32 v2, v1, 4, v2\nv_add_u32 v2, s63, v2")
        a(f"v_cndmask_b32 v{8+i}, v11, v2, vcc")
    a("v_lshrrev_b32 v17, 3, v0\nv_and_b32 v18, 7, v0\nv_lshrrev_b32 v2, 4, v0\nv_xor_b32 v3, v18, v2\nv_lshlrev_b32 v3, 4, v3\nv_lshl_add_u32 v16, v17, 10, v3")
    a(f"s_lshl2_add_u32 s63, s{S_MI}, s{YW}\ns_lshl_b32 s63, s63, 15")
    IDL = opt.get("idle", 1)
    if not IDL: a(f"s_cmp_eq_u32 s{S_FI}, 15\ns_cselect_b32 s63, 0x80000000, s63")
    a("v_add_u32 v4, s63, v16\nv_xor_b32 v5, 64, v4\nv_add_u32 v5, 8192, v5\nv_add_u32 v6, 16384, v4\nv_add_u32 v7, 16384, v5")
    a(f"s_lshl_b32 s{XLO}, s{YW}, 12\ns_mul_i32 s{GLO}, s{YW}, 3072\ns_add_u32 s{GLO}, s{GLO}, {GOFF}\ns_mov_b32 s{CIX}, s{S_ROT}")

    vm = VmTracker(a)
    dmas = []
    for c in range(8):
        base = (c % 3) * STAGE
        W = []
        for i in range(3):
            for gu in range(2):
                W.append((f"s_add_u32 m0, s{GLO}, {base + gu*(UOFF-GOFF) + 1024*i}", f"buffer_load_dwordx4 v{8+i}, {srd((S_WG, S_WU)[gu])}, s67 offen lds"))
        Xd = [(f"s_add_u32 m0, s{XLO}, {base + 1024*i}", f"buffer_load_dwordx4 v{4+i}, {srd(S_Q)}, s66 offen lds") for i in range(4)]
        seq = (Xd + W) if c in opt.get("xfirst", ()) else (W + Xd)
        for k, (m, d) in enumerate(seq): dmas.append((c, k, m, d))
    def chunk_op(c, k, m, d):
        def f():
            if k == 0: a(f"s_lshl_b32 s66, s{CIX}, 7\ns_mul_i32 s67, s{CIX}, 176128")
            if k == 0 and IDL and c >= opt.get("idlex", 0): a(f"s_cmp_eq_u32 s{S_FI}, 15\ns_cselect_b32 s66, 0x40000000, s66")
            a(m)
            a({0: f"s_add_u32 s{CIX}, s{CIX}, 1", 1: f"s_and_b32 s{CIX}, s{CIX}, 7"}.get(k, "s_nop 0"))
            vm.issue(d, ("c", c))
        return (("c", c), f)
    stream = [chunk_op(*x) for x in dmas]
    npos = [0]
    def issue_to(n):
        while npos[0] < min(n, len(stream)):
            stream[npos[0]][1](); npos[0] += 1
    def pos_end(c):
        return max(k for k, x in enumerate(stream) if x[0] == ("c", min(c, 7))) + 1
    AH = opt.get("ahead", [10, 5, 6, 9, 9, 9, 10])
    def target(p):
        return min(pos_end(p + 1) + AH[p + 1], pos_end(p + 2))

    a("s_waitcnt lgkmcnt(0)")
    stamp("karg")
    issue_to(opt.get("first", 5))
    common_late()
    a(f"s_load_dwordx2 s[{S_SM}:{S_SM+1}], s[0:1], 32\ns_load_dwordx2 s[{S_SD}:{S_SD+1}], s[0:1], 40")
    a(f"s_load_dwordx2 s[{S_WD}:{S_WD+1}], s[0:1], 72\ns_load_dwordx2 s[{S_DBG}:{S_DBG+1}], s[0:1], 88")
    srdw(a, S_SM, 2097152); srdw(a, S_WD, 1409024)
    R = {}
    nxt = [184]
    def reg(name, n=1):
        R[name] = nxt[0]; nxt[0] += n
        assert nxt[0] <= 224
        return R[name]
    a("v_and_b32 v1, 15, v0")
    flag_regs(YW)
    a(f"s_lshr_b32 s{CH}, s{YW}, 1\ns_and_b32 s{DH}, s{YW}, 1")
    a(f"s_and_b32 s60, s{S_J}, 15\ns_lshl1_add_u32 s60, s60, s{CH}\ns_lshr_b32 s61, s{S_J}, 4\ns_lshl1_add_u32 s60, s60, s61")
    a(f"s_lshl_b32 s61, s{S_XCD}, 6\ns_add_u32 s{DCH}, s60, s61")
    c0, c1 = reg("cra0"), reg("cra1")
    a(f"v_lshrrev_b32 v3, 2, v1\nv_lshl_add_u32 v3, v2, 3, v3\nv_mul_u32_u24 v3, 192, v3\nv_and_b32 v{c0}, 3, v1\nv_lshl_add_u32 v3, v{c0}, 3, v3")
    a(f"s_mul_i32 s60, s{CH}, {UOFF-GOFF}\ns_add_u32 s60, s60, {GOFF}\nv_add_u32 v3, s60, v3")
    a(f"v_and_b32 v{c0}, 1, v2\ns_mul_i32 s60, s{DH}, 3\ns_add_u32 s61, s60, 1")
    a(f"v_xor_b32 v{c1}, s61, v{c0}\nv_xor_b32 v{c0}, s60, v{c0}\nv_lshl_add_u32 v{c0}, v{c0}, 5, v3\nv_lshl_add_u32 v{c1}, v{c1}, 5, v3")
    for i in range(4): a(f"v_mov_b32 v{72+i}, 0x3f803f80")
    a(f"s_lshr_b32 s60, s{S_MI}, 3\ns_lshl1_add_u32 s60, s{S_FI}, s60\ns_lshl_b32 s38, s60, 7\ns_add_u32 s38, s38, {C_CS}\ns_mul_i32 s60, s60, 6144\ns_mul_i32 s61, s{YW}, 192\ns_add_u32 s60, s60, s61\ns_add_u32 s60, s60, {WS_CSP}")
    a(f"v_lshl_add_u32 v3, v0, 2, s60\nv_cmp_gt_u32 vcc, 48, v0\ns_and_b32 s61, s{S_MI}, 7\ns_mul_i32 s61, s61, 768\ns_add_u32 s60, s60, s61")
    a(f"v_lshl_add_u32 v{reg('csst')}, v2, 4, s60\nv_cndmask_b32 v{reg('csld')}, v11, v3, vcc\nv_add_u32 v{reg('csld2')}, 3072, v{R['csld']}")
    r0, r1, r2 = reg("kvl"), reg("kvg0"), reg("kvg1")
    a(f"v_xor_b32 v{r0}, v18, v17\nv_lshlrev_b32 v{r0}, 4, v{r0}\nv_lshl_add_u32 v{r0}, v17, 7, v{r0}")
    a(f"s_lshl_b32 s60, s{YW}, 11\ns_add_u32 s60, s60, {L_KVS}\nv_add_u32 v{r0}, s60, v{r0}")
    a(f"v_lshlrev_b32 v{r1}, 4, v18\nv_lshl_add_u32 v{r1}, v17, 12, v{r1}")
    a(f"s_lshl2_add_u32 s60, s{S_DB2}, s{YW}\ns_lshl_b32 s60, s60, 16\ns_lshl_b32 s61, s{S_TT2}, 7\ns_sub_u32 s60, s60, s61\ns_add_u32 s60, s60, {WS_KVT + 31*128}\nv_add_u32 v{r1}, s60, v{r1}\nv_add_u32 v{r2}, 32768, v{r1}")
    a(f"s_lshl2_add_u32 s60, s{S_MI}, s{YW}\ns_lshl_b32 s60, s60, 8\ns_add_u32 s60, s60, {WS_STATS}\nv_and_b32 v3, 31, v0\nv_lshl_add_u32 v{reg('mug')}, v3, 3, s60")
    a(f"s_lshl_b32 s60, s{YW}, 7\ns_add_u32 s61, s60, {L_MU}\nv_lshl_add_u32 v{reg('mul')}, v3, 2, s61\ns_add_u32 s61, s60, {L_ST2}\nv_lshl_add_u32 v{reg('st2l')}, v1, 3, s61")
    a(f"s_mul_i32 s60, s{YW}, 192\ns_add_u32 s60, s60, {L_CS}\nv_lshl_add_u32 v{reg('csl')}, v0, 2, s60")
    a(f"s_lshl_b32 s60, s{S_XCD}, 5\ns_add_u32 s60, s60, s{S_J}\ns_lshl2_add_u32 s60, s60, s{YW}\ns_lshl_b32 s60, s60, 11\ns_add_u32 s60, s60, {WS_KVT}\nv_lshl_add_u32 v{reg('ug')}, v0, 4, s60")
    a(f"s_mul_i32 s73, s{CH}, {USTR}\ns_add_u32 s73, s73, {L_U}\ns_lshl_b32 s61, s{DH}, 11\ns_add_u32 s71, s73, s61")
    a(f"s_lshl_b32 s60, s{DCH}, 12\ns_add_u32 s61, s61, s60\ns_add_u32 s61, s61, {WS_YT}\nv_lshl_add_u32 v{reg('yst')}, v0, 4, s61")
    a(f"s_xor_b32 s61, s{DH}, 1\ns_lshl1_add_u32 s60, s61, s60\nv_lshl_add_u32 v{reg('kcg')}, v0, 4, s60")
    a(f"s_mul_i32 s74, s{YW}, 4160\ns_add_u32 s74, s74, {L_KC}\ns_lshl2_add_u32 s75, s61, s74\ns_add_u32 s75, s75, 28")
    r0 = reg("wdg")
    a(f"v_and_b32 v3, 1, v2\ns_lshl_b32 s60, s{DH}, 1\nv_or_b32 v3, s60, v3\nv_lshlrev_b32 v3, 1, v3\nv_xor_b32 v{r0}, v18, v3\nv_lshlrev_b32 v{r0}, 4, v{r0}")
    a(f"v_lshl_add_u32 v{r0}, v17, 10, v{r0}\ns_lshl_b32 s60, s{YW}, 13\ns_lshl_b32 s61, s{S_DB2}, 7\ns_add_u32 s19, s60, s61\nv_add_u32 v{r0}, s19, v{r0}")
    r0, r1 = reg("xt0"), reg("xt1")
    a(f"s_lshl2_add_u32 s60, s{S_TT2}, s{YW}\ns_lshl_b32 s61, s60, 7\ns_add_u32 s61, s61, {WS_STATS}\nv_lshl_add_u32 v{reg('st2g')}, v1, 3, s61")
    a(f"s_lshl_b32 s60, s60, 14\ns_lshl_b32 s61, s{S_DB2}, 7\ns_add_u32 s60, s60, s61\nv_add_u32 v{r0}, s60, v16\nv_xor_b32 v{r1}, 64, v{r0}\nv_add_u32 v{r1}, 8192, v{r1}")
    a(f"s_lshl_b32 s60, s{YW}, 11\ns_add_u32 s60, s60, {L_XL}\nv_lshl_add_u32 v{reg('xtl')}, v0, 4, s60")
    r0, r1 = reg("yt0"), reg("yt1")
    a(f"v_and_b32 v3, 3, v0\nv_xor_b32 v3, v3, v2\nv_lshlrev_b32 v3, 4, v3\nv_lshl_add_u32 v{r0}, v17, 12, v3\nv_bfe_u32 v3, v0, 2, 1\nv_lshl_add_u32 v{r0}, v3, 9, v{r0}")
    a(f"s_lshl2_add_u32 s60, s{S_DB2}, s{YW}\ns_lshl_b32 s60, s60, 16\ns_lshr_b32 s61, s{S_TT2}, 3\ns_lshl_b32 s61, s61, 10\ns_add_u32 s60, s60, s61")
    a(f"s_and_b32 s61, s{S_TT2}, 7\ns_lshl_b32 s61, s61, 6\ns_add_u32 s60, s60, s61\ns_add_u32 s60, s60, {WS_YT}\nv_add_u32 v{r0}, s60, v{r0}\nv_add_u32 v{r1}, 32768, v{r0}")
    ra, rb = reg("ca", 4), reg("cb")
    a(f"s_mul_i32 s60, s{CH}, 8320\ns_add_u32 s18, s60, {L_KC}\ns_lshl_b32 s61, s{DH}, 8\ns_add_u32 s60, s18, s61")
    a(f"v_and_b32 v3, 1, v1\nv_mul_u32_u24 v{ra}, 4158, v3\nv_lshl_add_u32 v{ra}, v1, 1, v{ra}\nv_lshl_add_u32 v{ra}, v2, 4, v{ra}\nv_add_u32 v{ra}, s60, v{ra}")
    a(f"v_add_u32 v{ra+1}, 1024, v{ra}\nv_add_u32 v{ra+2}, 2048, v{ra}\nv_add_u32 v{ra+3}, 3072, v{ra}")
    a(f"s_add_u32 s60, s73, s61\ns_add_u32 s17, s60, 4096\ns_add_u32 s60, s60, 480\nv_lshlrev_b32 v3, 1, v1\nv_sub_u32 v3, v2, v3\nv_lshl_add_u32 v{rb}, v3, 4, s60")
    a(f"s_lshl_b32 s61, s{DH}, 12\ns_add_u32 s60, s18, s61\nv_lshl_add_u32 v{reg('exo')}, v0, 4, s60\ns_xor_b32 s61, s61, 4096\ns_add_u32 s60, s18, s61\nv_lshl_add_u32 v{reg('exp')}, v0, 4, s60")
    a("v_mov_b32 v19, 0\nv_lshl_add_u32 v3, v0, 2, s17\nds_write_b32 v3, v19")
    a(f"s_lshl_b32 s8, s{S_DB2}, 7\ns_lshl_b32 s9, s{S_MI}, 7\ns_add_u32 s9, s9, {C_ST}")
    a(f"s_lshr_b32 s60, s{S_TT2}, 1\ns_lshl_b32 s60, s60, 7\ns_add_u32 s60, s60, {C_ST}\ns_cmp_eq_u32 s{YW}, 1\ns_cselect_b32 s60, s9, s60")
    a(f"s_lshl_b32 s61, s{S_XCD}, 7\ns_cmp_eq_u32 s{YW}, 0\ns_cselect_b32 s10, s61, s60\ns_cselect_b32 s11, 32, 16")
    a(f"s_cmp_eq_u32 s{YW}, 3\ns_cselect_b32 s10, s38, s10\ns_cselect_b32 s11, 8, s11")
    a(f"s_lshr_b32 s60, s{DCH}, 4\ns_lshl1_add_u32 s60, s60, s{DH}\ns_lshl_b32 s60, s60, 7\ns_add_u32 s12, s60, {C_Y}")
    a(f"s_lshl2_add_u32 s60, s{S_DB2}, s{YW}\ns_lshr_b32 s61, s{S_TT2}, 4\ns_lshl1_add_u32 s60, s60, s61\ns_lshl_b32 s60, s60, 7\ns_add_u32 s13, s60, {C_Y}")
    for kh in range(2):
        a(f"s_sub_u32 s{14+kh}, s{S_R2}, {22-kh}\ns_cselect_b32 s{14+kh}, s{S_R2}, s{14+kh}")
    a("s_waitcnt lgkmcnt(0)")
    a(f"s_lshl_b32 s60, s{DCH}, 12\ns_load_dword s36, s[{S_SM}:{S_SM+1}], s60")
    a(f"s_andn2_b32 s61, s{DCH}, 1\ns_lshl_b32 s61, s61, 1\ns_load_dword s72, s[{S_SD}:{S_SD+1}], s61")
    stamp("setup")
    a(f"s_setprio {opt.get('yprio', 2)}")
    issue_to(target(-1))
    a("s_waitcnt lgkmcnt(0)")
    a(f"v_lshl_add_u32 v3, v0, 2, s74\ns_lshl_b32 s36, s36, 16\nv_writelane_b32 v19, s36, 7")
    a(f"s_lshr_b32 s60, 255, s{DH}\ns_mov_b32 exec_lo, s60\ns_mov_b32 exec_hi, 0\nds_write_b32 v3, v19\ns_mov_b64 exec, -1")
    a(f"s_and_b32 s60, s{DCH}, 1\ns_lshl_b32 s60, s60, 4\ns_lshr_b32 s72, s72, s60\ns_and_b32 s72, s72, 0xffff\ns_cmp_eq_u32 s{DH}, 0\ns_cselect_b32 s72, s72, 0")
    DG = 168
    a("v_lshl_add_u32 v3, v2, 3, v1\nv_sub_u32 v3, 15, v3\nv_and_b32 v20, 1, v3\nv_lshlrev_b32 v20, 4, v20\nv_lshlrev_b32 v20, v20, s72\nv_lshrrev_b32 v3, 1, v3")
    for i in range(4): a(f"v_cmp_eq_u32 vcc, {i}, v3\ns_nop 1\nv_cndmask_b32 v{DG+i}, 0, v20, vcc")

    B0R = 96
    a(f"s_lshl_b32 s16, s{YW}, 10\ns_add_u32 s60, s16, {2*STAGE}\nv_lshl_add_u32 v{reg('b0l')}, v0, 4, s60")
    def wd_lds(p, kh):
        if p < 5: return 2*STAGE + kh*20480 + p*4096
        if p == 5: return L_E + kh*4096
        return kh*20480 + (p - 6)*4096
    def y_wd(p, kh, toreg, tag):
        a(f"s_add_u32 s60, s{14+kh}, {p}\ns_sub_u32 s61, s60, {22-kh}\ns_cselect_b32 s61, s60, s61\ns_add_u32 s61, s61, {22*kh}")
        if toreg:
            a("s_lshl_b32 s61, s61, 15")
            vm.issue(f"buffer_load_dwordx4 {vr(B0R + 4*(5*kh+p), 4)}, v{R['wdg']}, {srd(S_WD)}, s61 offen", tag)
        else:
            a(f"s_add_u32 m0, s16, {wd_lds(p, kh)}\ns_lshl_b32 s61, s61, 15")
            vm.issue(f"buffer_load_dwordx4 v{R['wdg']}, {srd(S_WD)}, s61 offen lds", tag)
    def y_kc(i):
        a("s_mov_b32 m0, s75\ns_nop 0")
        vm.issue(f"buffer_load_dwordx4 v{R['kcg']}, {srd(S_SM)}, 0 offen offset:{1024*i} lds", "uk")
    def batch_ops():
        out = []
        if PLACE[0] == "S":
            for i in range(4): out.append(("kc", lambda i=i: y_kc(i)))
        for p in range(6):
            if PLACE[1 + p] != "S": continue
            for kh in range(2): out.append(("b0", lambda p=p, kh=kh: y_wd(p, kh, p < 5, "b0")))
        return out
    CLS = opt.get("cls", [2, 3, 4, 5] if "S" in PLACE else [2])
    if opt.get("clsmode", 1) == 0: a(f"s_lshr_b32 s60, s{S_J}, 2\ns_add_u32 s60, s60, s{S_J}\ns_and_b32 s37, s60, {len(CLS)-1}")
    else: a(f"s_add_u32 s60, s{S_J}, s{S_XCD}\ns_and_b32 s37, s60, {len(CLS)-1}")

    vm.need(("c", 0), "lgkmcnt(0)")
    stamp("c0land")
    a("s_barrier")
    a(f"ds_read_b128 v[60:63], v{R['kvl']}\nds_read_b128 v[64:67], v{R['kvl']} offset:1024")
    for jj in range(3):
        for ks in range(2):
            for h in range(2):
                r = 32 + 8 * jj + 4 * ks + 2 * h
                a(f"ds_read_b64_tr_b16 {vr(r,2)}, v{R['cra1'] if jj == 1 else R['cra0']} offset:{ks*6144 + h*768 + (64 if jj == 2 else 0)}")
    a("s_waitcnt lgkmcnt(12)")
    vm.issue(f"buffer_store_dwordx4 v[60:63], v{R['kvg0']}, {srd(S_WS)}, 0 offen sc1", "st")
    vm.issue(f"buffer_store_dwordx4 v[64:67], v{R['kvg1']}, {srd(S_WS)}, 0 offen sc1", "st")
    a("s_waitcnt lgkmcnt(0)")
    for ks in range(2):
        for jj in range(3):
            c = 20 + 4 * jj
            a(f"v_mfma_f32_16x16x32_bf16 {vr(c,4)}, {vr(32+8*jj+4*ks,4)}, v[72:75], {'0' if ks == 0 else vr(c,4)}")
    a("s_mov_b32 exec_lo, 0x00010001\ns_mov_b32 exec_hi, 0x00010001\ns_nop 5")
    for jj in range(3):
        vm.issue(f"buffer_store_dwordx4 {vr(20+4*jj,4)}, v{R['csst']}, {srd(S_WS)}, 0 offen offset:{64*jj} sc1", "st")
    a("s_mov_b64 exec, -1")
    issue_to(target(0))
    vm.need(("c", 1)); stamp("a0"); a("s_barrier"); stamp("P0")
    a(f"s_load_dword s58, s[{S_DBG}:{S_DBG+1}], 0")
    base_stream, base_pos, base_q = list(stream), npos[0], list(vm.q)
    nst = len(names[1])
    for ci, b in enumerate(CLS):
        stream[:] = base_stream; npos[0] = base_pos; vm.q = list(base_q)
        del names[1][nst:]
        if isinstance(b, int): b = [b, b]
        ops = batch_ops()
        h = len(ops) // 2
        for bb, part in ((b[1], ops[h:]), (b[0], ops[:h])):
            at = pos_end(bb)
            assert at >= npos[0]
            stream[at:at] = part
        a(f"L_ycls{ci}:")
        if ci + 1 < len(CLS): a(f"s_cmp_lg_u32 s37, {ci}\ns_cbranch_scc1 L_ycls{ci+1}")
        issue_to(target(1))
        vm.need({("c", 2), "st"}); stamp("a1"); a("s_barrier"); stamp("P1")
        a(f"s_cmp_lg_u32 s{YW}, 0\ns_cbranch_scc1 L_ynosig{ci}")
        a(f"s_mov_b32 s60, 0\nL_ygo{ci}:\ns_waitcnt lgkmcnt(0)\ns_cmp_lg_u32 s58, 0\ns_cbranch_scc1 L_ygook{ci}")
        a(f"s_load_dword s58, s[{S_DBG}:{S_DBG+1}], 0 glc\ns_sleep 4\ns_add_u32 s60, s60, 1\ns_cmp_lt_u32 s60, {SPIN_MAX}\ns_cbranch_scc1 L_ygo{ci}\nL_ygook{ci}:")
        ssignal(8)
        ssignal(9)
        ssignal(38)
        a(f"L_ynosig{ci}:")
        for p in (2, 3, 4):
            issue_to(target(p))
            vm.need(("c", p + 1)); stamp(f"a{p}"); a("s_barrier"); stamp(f"P{p}")
        spoll_issue(10)
        issue_to(target(5))
        spoll_check(10, "s11")
        vm.need(("c", 6)); stamp("a5"); a("s_barrier"); stamp("P5")
        issue_to(len(stream))
        assert stream[-1][0] == ("c", 7)
        if ci + 1 < len(CLS): a("s_branch L_yjoin")
    a("L_yjoin:")
    vm.q = [("c", 7)]
    for r in range(8):
        vm.issue(f"buffer_load_dword v{32+r}, v{R['csld'] if r < 4 else R['csld2']}, {srd(S_WS)}, 0 offen offset:{768*(r%4)} sc1", "cs")
    vm.issue(f"buffer_load_dword v40, v{R['mug']}, {srd(S_WS)}, 0 offen sc1", "cs")
    vm.issue(f"buffer_load_dwordx2 v[42:43], v{R['st2g']}, {srd(S_WS)}, 0 offen sc1", "cs")
    a("s_mov_b32 m0, s71\ns_nop 0")
    vm.issue(f"buffer_load_dwordx4 v{R['ug']}, {srd(S_WS)}, 0 offen sc1 lds", "uk")
    vm.issue(f"buffer_load_dwordx4 v{R['ug']}, {srd(S_WS)}, 0 offen offset:1024 sc1 lds", "uk")
    vm.need(("c", 7))
    lds_set(FL_YC7)
    if PLACE[0] != "S":
        for i in range(4): y_kc(i)
    vm.issue(f"buffer_load_dwordx4 v[160:163], v{R['xt0']}, {srd(S_Q)}, 0 offen", "xt")
    vm.issue(f"buffer_load_dwordx4 v[164:167], v{R['xt1']}, {srd(S_Q)}, 0 offen", "xt")
    flq = [5*kh + p for kh in range(2) for p in range(5) if PLACE[1+p] == "S"]
    HASFL = bool(flq)
    def b0_flush(n, sleep=0):
        for _ in range(n):
            if not flq: return
            k = flq.pop(0)
            a(f"ds_write_b128 v{R['b0l']}, {vr(B0R + 4*k, 4)} offset:{(k // 5)*20480 + (k % 5)*4096}")
            if sleep: a(f"s_sleep {sleep}")
    ybq = [(p, kh) for p in range(6) for kh in range(2) if PLACE[1+p] == "Y"]
    for _ in range(opt.get("yb0", 0)):
        if ybq: y_wd(*ybq.pop(0), False, "yb")
    b0_flush(opt.get("fl0", 0), opt.get("flsleep", 2))
    vm.need("cs")
    a("v_add_f32 v32, v32, v33\nv_add_f32 v34, v34, v35\nv_add_f32 v36, v36, v37\nv_add_f32 v38, v38, v39\nv_add_f32 v32, v32, v34\nv_add_f32 v36, v36, v38\nv_add_f32 v32, v32, v36")
    a(f"ds_write_b32 v{R['mul']}, v40\nds_write_b64 v{R['st2l']}, v[42:43]")
    a(f"s_mov_b32 exec_hi, 0xffff\nds_write_b32 v{R['csl']}, v32\ns_mov_b64 exec, -1")
    a("s_waitcnt lgkmcnt(0)")
    lds_set(FL_YCS)
    stamp("csdone")
    while ybq: y_wd(*ybq.pop(0), False, "yb")
    vm.need("uk")
    lds_set(FL_YRDY)
    if YA:
        lds_wait(15, FL_XS0, 16, sleep=1)
        for p in range(6, 11):
            for kh in range(2): y_wd(p, kh, False, "ya")
    stamp("yaissued")
    lds_wait(15, FL_YRDY, 16)
    CACC = 224
    def AF(st, g): return 32 + 64 * st + 4 * g
    def BF(st, m): return 64 + 64 * st + 4 * m
    t = LgkmTracker(a)
    def conv_reads(dl):
        st = dl & 1
        out = []
        for g in range(8):
            o = 128 * (g & 1) + 16 * dl
            out.append(lambda g=g, o=o: t.issue(f"ds_read2_b32 {vr(AF(st,g),2)}, v{R['ca']+(g>>1)} offset0:{o} offset1:{o+1}", ("a", st, g, 0)))
            out.append(lambda g=g, o=o: t.issue(f"ds_read2_b32 {vr(AF(st,g)+2,2)}, v{R['ca']+(g>>1)} offset0:{o+2} offset1:{o+3}", ("a", st, g, 1)))
            out.append(lambda g=g: t.issue(f"ds_read_b128 {vr(BF(st,g),4)}, v{R['cb']} offset:{(7-g)*512 + 64*dl}", ("b", st, g)))
        return out
    for k, f in enumerate(conv_reads(0)):
        f()
        if k % 4 == 3 and not opt.get("fllate", 1): b0_flush(1, opt.get("flsleep2", 1))
    if opt.get("fllate", 1) and HASFL: lds_wait(15, FL_XDONE, 19, sleep=1)
    b0_flush(10)
    t.drain()
    lds_set(FL_YFL)
    stamp("yrdy")
    a("s_setprio 0")
    lds_wait(14, FL_XEPI, 19, sleep=1)
    a(f"s_setprio {opt.get('convprio', 2)}")
    stamp("convstart")
    def conv_mfma(st, N, g):
        t.need({("a", st, g, 0), ("a", st, g, 1), ("b", st, N - g)})
        c = CACC + 4 * N
        a(f"v_mfma_f32_16x16x32_bf16 {vr(c,4)}, {vr(AF(st,g),4)}, {vr(BF(st,N-g),4)}, {vr(c,4)}")
    for dl in range(3):
        pend = conv_reads(dl + 1)
        if dl == opt.get("b0wait", 1):
            vm.drain(); lds_set(FL_YB0); t.q.append(("flag",))
        for N in range(8):
            if dl == 0: a(f"v_mfma_f32_16x16x32_bf16 {vr(CACC+4*N,4)}, {vr(DG,4)}, {vr(BF(0,N),4)}, 0")
            for g in range(N + 1):
                conv_mfma(dl & 1, N, g)
                if pend: pend.pop(0)()
        if opt.get("cst"): stamp(f"dl{dl}"); t.q = []
    t.drain()
    lds_set(FL_YKA)
    a(f"s_cmp_eq_u32 s{DH}, 0\ns_cbranch_scc1 L_yl0")
    for dh in (1, 0):
        if dh == 0: a("L_yl0:")
        order = list(range(8)) if dh == 1 else list(range(7, -1, -1))
        seq = [(N, g) for N in order for g in range(N + 1)]
        done_at = {N: max(k for k, x in enumerate(seq) if x[0] == N) for N in order}
        wq = list(order[:4]); chk = 7
        for k, (N, g) in enumerate(seq):
            conv_mfma(1, N, g)
            if k == chk - 4: a(f"ds_read_b32 v19, v12 offset:{FL_YKA}")
            if k == chk - 1: a("s_waitcnt lgkmcnt(0)\nv_cmp_eq_u32 vcc, 0, v19")
            if k == chk:
                a(f"s_cbranch_vccz L_yka{dh}")
                lds_wait(12, FL_YKA, 19)
                a(f"L_yka{dh}:")
            if k > chk and wq and k >= done_at[wq[0]] + 8:
                N2 = wq.pop(0)
                a(f"ds_write_b128 v{R['exo']}, {vr(CACC+4*N2,4)} offset:{1024*(N2 & 3)}")
        assert not wq
        a("s_waitcnt lgkmcnt(0)")
        lds_set(FL_YKB)
        a("s_setprio 2")
        if dh == 0: stamp("convend")
        lds_wait(12, FL_YKB, 19)
        for i in range(4): a(f"ds_read_b128 {vr(32+4*i,4)}, v{R['exp']} offset:{1024*i}")
        for i in range(4):
            a(f"s_waitcnt lgkmcnt({3-i})")
            for r in range(4): a(f"v_add_f32 v{32+4*i+r}, v{CACC+16*dh+4*i+r}, v{32+4*i+r}")
        if dh == 1: a("s_branch L_ylast")
    a("L_ylast:")
    if opt.get("cst"): stamp("yred")
    lds_set(FL_YFIN)
    for pr in range(2):
        d = 60 + 4 * pr
        for b in range(2):
            c = 32 + 4 * (2 * pr + b)
            a(f"v_cvt_pk_bf16_f32 v{d+2*b}, v{c}, v{c+1}\nv_cvt_pk_bf16_f32 v{d+2*b+1}, v{c+2}, v{c+3}")
        a(f"s_nop 1\nv_permlane16_swap_b32 v{d}, v{d+2}\nv_permlane16_swap_b32 v{d+1}, v{d+3}")
        a(f"buffer_store_dwordx4 {vr(d,4)}, v{R['yst']}, {srd(S_WS)}, 0 offen offset:{1024*pr} sc1")
    if opt.get("cst"): stamp("ystored")
    lds_wait(15, FL_YFIN, 16)
    a(f"ds_write_b128 v{R['xtl']}, v[160:163]\nds_write_b128 v{R['xtl']}, v[164:167] offset:1024\ns_waitcnt lgkmcnt(0)")
    lds_set(FL_YXL)
    a("s_waitcnt vmcnt(0)")
    stamp("yflag")
    ssignal(12)
    a(f"s_load_dwordx2 s[{S_OUT}:{S_OUT+1}], s[0:1], 80\ns_setprio 0")
    srdw(a, S_OUT, 2097152)
    spoll_issue(13)
    a(f"s_lshl2_add_u32 s63, s{S_TT2}, s{YW}")
    final_addr(63, 1)
    for k in range(2): a(f"ds_read_b64 {vr(XR+2*k,2)}, v{V_X+k}")
    a("s_waitcnt lgkmcnt(0)")
    for l in final_xp(): a(l)
    spoll_check(13, 16)
    stamp("ypolled")
    lds_wait(15, FL_XHI, 16, sleep=1)
    a(f"s_setprio 2\ns_lshl_b32 s63, s{YW}, 11\ns_add_u32 m0, s63, {L_YL}\ns_nop 0")
    a(f"buffer_load_dwordx4 v{R['yt0']}, {srd(S_WS)}, 0 offen sc1 lds")
    a("s_add_u32 m0, m0, 1024\ns_nop 0")
    a(f"buffer_load_dwordx4 v{R['yt1']}, {srd(S_WS)}, 0 offen sc1 lds")
    a("s_setprio 1\ns_waitcnt vmcnt(0)")
    stamp("ylanded")
    if prof:
        dump_stamps(1); a("s_mov_b64 exec, -1")
    a("s_barrier")
    for k in range(2):
        a(f"ds_read_b128 {vr(OV+4*k,4)}, v{V_RP} offset:{2048+1024*k}\nds_read_b128 {vr(240+4*k,4)}, v{V_RP} offset:{4096+1024*k}")
    a("s_branch L_final")

    a("L_X2:")
    role_now[0] = 0
    common_late()
    a(f"s_load_dwordx2 s[{S_WD}:{S_WD+1}], s[0:1], 72\ns_load_dwordx2 s[{S_OUT}:{S_OUT+1}], s[0:1], 80\ns_load_dwordx2 s[{S_DBG}:{S_DBG+1}], s[0:1], 88")
    srdw(a, S_WD, 1409024); srdw(a, S_OUT, 2097152)
    ACC, XF, WF = 160, 16, 80
    a(f"v_mov_b32 v10, 0\nv_lshlrev_b32 v8, 2, v0\nv_add_u32 v8, {L_FLG}, v8\nds_write2st64_b32 v8, v10, v10 offset0:0 offset1:1")
    a("s_xor_b32 s61, s2, 254\ns_or_b32 s61, s61, s3\ns_cbranch_scc1 L_noclear")
    a("s_waitcnt lgkmcnt(0)\nv_lshlrev_b32 v8, 7, v0\ns_movk_i32 s61, 8192\ns_movk_i32 s62, 16384")
    for so in ("0", "s61", "s62"): a(f"buffer_store_dword v10, v8, {srd(S_WS)}, {so} offen sc1")
    a(f"s_waitcnt vmcnt(0) lgkmcnt(0)\ns_atomic_add s59, s[{S_DBG}:{S_DBG+1}], 0")
    a("L_noclear:")
    a(f"s_lshl_b32 s61, s3, 1\ns_sub_u32 s61, 7, s61\nv_sub_u32 v8, s61, v2\nv_xor_b32 v8, v8, v1\nv_and_b32 v8, 7, v8\nv_lshlrev_b32 v8, 4, v8\nv_lshl_add_u32 v8, v1, 7, v8\nv_add_u32 v8, {L_KVS}, v8")
    a(f"s_lshl_b32 s64, s63, 4\ns_add_u32 s64, s64, {WS_STATS}\nv_lshl_add_u32 v9, v2, 3, s64")
    TWs, CWs, C3 = 62, 63, 64
    AD = 132
    CSR, MUR = 104, 128
    V_CS, V_MU, V_H0, V_H1 = 144, 145, 146, 147
    a(f"s_and_b32 s{TWs}, s3, 1\ns_lshr_b32 s{CWs}, s3, 1\ns_mul_i32 s{C3}, s{CWs}, 3")
    a("v_and_b32 v1, 15, v0\nv_lshrrev_b32 v2, 4, v0")
    a("v_lshrrev_b32 v3, 1, v1\nv_xor_b32 v3, v3, v2\nv_lshlrev_b32 v3, 4, v3\nv_lshl_add_u32 v3, v1, 7, v3")
    a(f"s_lshl_b32 s60, s{TWs}, 13\nv_add_u32 v{AD}, s60, v3\nv_xor_b32 v{AD+1}, 64, v{AD}")
    a("v_lshrrev_b32 v3, 2, v1\nv_lshl_add_u32 v4, v2, 3, v3\nv_mul_u32_u24 v3, 192, v4\nv_and_b32 v5, 3, v1\nv_lshl_add_u32 v3, v5, 3, v3")
    a(f"v_add_u32 v3, {GOFF}, v3\nv_and_b32 v6, 1, v2\ns_add_u32 s60, s{C3}, 1")
    a(f"v_xor_b32 v7, s60, v6\nv_lshl_add_u32 v{AD+3}, v7, 5, v3\nv_xor_b32 v7, s{C3}, v6\nv_lshl_add_u32 v{AD+2}, v7, 5, v3")
    for sl in (1, 2):
        for q in range(4): a(f"v_add_u32 v{AD+4*sl+q}, {sl*STAGE}, v{AD+q}")
    flag_regs(3)
    a(f"s_lshl_b32 s60, s{C3}, 6\ns_add_u32 s60, s60, {L_CS}\nv_lshl_add_u32 v{V_CS}, v2, 4, s60")
    a(f"s_lshl_b32 s60, s{TWs}, 8\ns_add_u32 s60, s60, {L_MU}\nv_lshl_add_u32 v{V_MU}, v1, 2, s60")
    a("v_mul_u32_u24 v3, 44032, v6\nv_lshrrev_b32 v7, 1, v2\nv_lshl_add_u32 v3, v7, 8, v3\nv_lshl_add_u32 v3, v1, 4, v3")
    a(f"s_lshl1_add_u32 s67, s{S_MI}, s{TWs}\ns_mul_i32 s60, s67, 176128\ns_mul_i32 s68, s{S_FI}, 6\ns_add_u32 s68, s68, s{C3}")
    a(f"s_lshl_b32 s61, s68, 9\ns_add_u32 s60, s60, s61\ns_add_u32 s60, s60, {WS_H}\nv_add_u32 v{V_H0}, s60, v3\nv_add_u32 v{V_H1}, 88064, v{V_H0}")
    a(f"s_lshl_b32 s65, s67, 8\ns_add_u32 s65, s65, {C_H}\ns_lshl1_add_u32 s66, s{S_FI}, s{CWs}")
    TH, KH = TWs, CWs
    a("v_lshlrev_b32 v4, 7, v4\nv_lshl_add_u32 v4, v5, 3, v4\nv_lshlrev_b32 v10, 1, v6\nv_lshrrev_b32 v5, 3, v1\nv_or_b32 v3, v10, v5\nv_lshl_add_u32 v4, v3, 5, v4")
    a(f"s_mul_i32 s69, s{KH}, 20480\ns_add_u32 s60, s69, {2*STAGE}\nv_add_u32 v4, s60, v4")
    a("v_xor_b32 v5, 32, v4\nv_xor_b32 v6, 64, v4\nv_xor_b32 v7, 96, v4")
    a("v_and_b32 v3, 7, v0\nv_xor_b32 v3, v3, v10\nv_lshlrev_b32 v3, 4, v3\nv_lshrrev_b32 v10, 3, v0\nv_lshl_add_u32 v3, v10, 10, v3")
    a(f"s_lshl_b32 s60, s{TH}, 14\ns_lshl_b32 s61, s{S_DB2}, 7\ns_add_u32 s60, s60, s61\nv_add_u32 v148, s60, v3\nv_xor_b32 v149, 64, v148\nv_add_u32 v149, 8192, v149")
    a(f"s_lshl1_add_u32 s60, s{S_TT2}, s{TH}\ns_lshl1_add_u32 s75, s60, s{KH}\ns_mul_i32 s61, s60, 88064\ns_add_u32 s61, s61, {WS_H}")
    a(f"s_mul_i32 s60, s{KH}, 44032\ns_add_u32 s60, s60, s61\nv_lshl_add_u32 v151, v0, 4, s60\ns_xor_b32 s60, s{KH}, 1\ns_mul_i32 s60, s60, 44032\ns_add_u32 s60, s60, s61\nv_lshl_add_u32 v150, v0, 4, s60")
    xvm.need("k")
    stamp("kvland")
    KF, TW, VF, KS = 48, 72, 80, 96
    for i in range(11): a(f"v_lshlrev_b32 v{KF+2*i}, 16, v{16+i}\nv_and_b32 v{KF+2*i+1}, 0xffff0000, v{16+i}")
    for c in range(2):
        for hh in range(2):
            a(f"v_lshlrev_b32 v{TW+4*hh+c}, 16, v{36+2*c+hh}\nv_and_b32 v{TW+4*hh+2+c}, 0xffff0000, v{36+2*c+hh}")
    for i in range(8):
        a(f"v_pk_mul_f32 {vr(KS+2*i,2)}, {vr(KF+2*i,2)}, {vr(TW+6,2)}")
    for jt in (2, 1, 0):
        for i in range(8):
            a(f"v_pk_fma_f32 {vr(KS+2*i,2)}, {vr(KF+2*(i+3-jt),2)}, {vr(TW+2*jt,2)}, {vr(KS+2*i,2)}")
    xvm.need("v")
    for i in range(8): a(f"v_lshlrev_b32 v{VF+2*i}, 16, v{28+i}\nv_and_b32 v{VF+2*i+1}, 0xffff0000, v{28+i}")
    for i in range(8): a(f"v_pk_mul_f32 {vr(KS+2*i,2)}, {vr(KS+2*i,2)}, {vr(VF+2*i,2)}")
    for c in range(2):
        for m in range(4):
            a(f"v_cvt_pk_bf16_f32 v{16+4*c+m}, v{KS+2*(7-2*m)+c}, v{KS+2*(6-2*m)+c}")
        a(f"ds_write_b128 v8, {vr(16+4*c,4)} offset:{4096*c}")
    xvm.need("s")
    SF = 48
    for i in range(8): a(f"v_lshlrev_b32 v{SF+2*i}, 16, v{40+i}\nv_and_b32 v{SF+2*i+1}, 0xffff0000, v{40+i}")
    def reduce32(src):
        a(f"v_add_f32 v{src}, v{src}, v{src+1}\ns_nop 1")
        for ctl in ("row_ror:8", "row_ror:4", "row_ror:2", "row_ror:1"):
            a(f"v_add_f32_dpp v{src}, v{src}, v{src} {ctl} row_mask:0xf bank_mask:0xf\ns_nop 1")
        a(f"v_mov_b32 v{src+1}, v{src}\ns_nop 1\nv_permlane16_swap_b32 v{src}, v{src+1}\nv_add_f32 v{src}, v{src}, v{src+1}")
    for i in range(4): a(f"v_pk_add_f32 {vr(64+2*i,2)}, {vr(SF+2*i,2)}, {vr(SF+8+2*i,2)}")
    a("v_pk_add_f32 v[64:65], v[64:65], v[68:69]\nv_pk_add_f32 v[66:67], v[66:67], v[70:71]\nv_pk_add_f32 v[64:65], v[64:65], v[66:67]")
    reduce32(64)
    a("v_mul_f32 v64, 0x3b000000, v64")
    for i in range(8): a(f"v_pk_add_f32 {vr(SF+2*i,2)}, {vr(SF+2*i,2)}, v[64:65] op_sel_hi:[1,0] neg_lo:[0,1] neg_hi:[0,1]")
    a(f"v_pk_mul_f32 v[66:67], {vr(SF,2)}, {vr(SF,2)}\nv_pk_mul_f32 v[68:69], {vr(SF+2,2)}, {vr(SF+2,2)}")
    for i in range(2, 8): a(f"v_pk_fma_f32 {vr(66+2*(i&1),2)}, {vr(SF+2*i,2)}, {vr(SF+2*i,2)}, {vr(66+2*(i&1),2)}")
    a("v_pk_add_f32 v[66:67], v[66:67], v[68:69]")
    reduce32(66)
    a("v_mul_f32 v66, 0x3b000000, v66")
    a("v_cvt_pk_bf16_f32 v66, v64, v66\nv_lshlrev_b32 v64, 16, v66\nv_and_b32 v66, 0xffff0000, v66\nv_add_f32 v66, 0x3727c5ac, v66")
    a("v_cvt_pk_bf16_f32 v66, v66, v66\nv_and_b32 v66, 0xffff0000, v66\nv_sqrt_f32 v66, v66\ns_nop 0")
    a("v_cvt_pk_bf16_f32 v66, v66, v66\nv_and_b32 v66, 0xffff0000, v66\nv_rcp_f32 v65, v66")
    a("s_waitcnt lgkmcnt(0)\ns_mov_b32 exec_lo, 1\ns_mov_b32 exec_hi, 1")
    a(f"buffer_store_dwordx2 v[64:65], v9, {srd(S_WS)}, 0 offen sc1")
    a("s_mov_b64 exec, -1")
    ST = 8
    a(f"s_sub_u32 s70, 22, s{KH}\ns_mul_i32 s71, s{KH}, 22\ns_sub_u32 s60, s{S_R2}, s70\ns_cselect_b32 s72, s{S_R2}, s60")
    a(f"s_add_u32 s72, s72, s71\ns_lshl_b32 s{ST}, s72, 10\ns_add_u32 s70, s70, s71\ns_lshl_b32 s70, s70, 10\ns_lshl_b32 s71, s71, 10")
    for i in range(1, 22):
        a(f"s_add_u32 s{ST+i}, s{ST+i-1}, 1024\ns_cmp_eq_u32 s{ST+i}, s70\ns_cselect_b32 s{ST+i}, s71, s{ST+i}")
    a(f"s_cmp_lg_u32 s{KH}, 0\ns_cselect_b32 s{ST+21}, 0x40000000, s{ST+21}")
    a(f"s_lshl_b32 s73, s{TH}, 11\ns_add_u32 s74, s69, s73")
    a(f"s_lshl_b32 s60, s{KH}, 14\ns_sub_u32 s70, {L_E}, s60\ns_sub_u32 s71, s70, {2*STAGE}\ns_sub_u32 s72, {L_E + 8192 - 2*STAGE}, s69")
    a(f"s_lshl1_add_u32 s67, s{S_TT2}, s{KH}\ns_lshl_b32 s67, s67, 7\ns_add_u32 s67, s67, {C_H}")
    for q in range(4): a(f"v_mov_b32 v{8+q}, v{148+q}")
    HSO = 40
    a("s_waitcnt lgkmcnt(0)")
    for jj in range(3): a(f"s_cmp_ge_u32 s68, {86 - jj}\ns_cselect_b32 s{HSO+jj}, 0x40000000, 0")
    a(f"s_lshl_b32 s60, s{KH}, 12\ns_add_u32 s43, s73, s60")
    a("s_setprio 1")
    a("s_waitcnt lgkmcnt(0)")
    stamp("p0done")
    a("s_barrier")
    stamp("Bstart")
    if opt.get("idle", 1): a(f"s_cmp_eq_u32 s{S_FI}, 15\ns_cbranch_scc1 L_xidle")
    t = LgkmTracker(a)
    def xread(c, i, ks):
        r = XF + 32 * (c & 1) + 8 * i + 4 * ks
        t.issue(f"ds_read_b128 {vr(r,4)}, v{AD+4*(c%3)+ks} offset:{2048*i}", ("x", c, i, ks))
    def wread(c, j, ks, h):
        jj, gu = j >> 1, j & 1
        r = WF + 8 * (j % 3) + 4 * ks + 2 * h
        off = gu * (UOFF - GOFF) + ks * 6144 + h * 768 + (64 if jj == 2 else 0)
        t.issue(f"ds_read_b64_tr_b16 {vr(r,2)}, v{AD+4*(c%3)+(3 if jj == 1 else 2)} offset:{off}", ("w", c, j, ks, h))
    def first_reads(c):
        out = [lambda: wread(c, 0, 0, 0), lambda: wread(c, 0, 0, 1), lambda: xread(c, 0, 0), lambda: wread(c, 0, 1, 0), lambda: wread(c, 0, 1, 1), lambda: xread(c, 0, 1)]
        for i in range(1, 4):
            for ks in range(2): out.append(lambda i=i, ks=ks: xread(c, i, ks))
        return out
    for f in first_reads(0): f()
    BAR = opt.get("bar", 33)
    slow = []
    def flag_check(put, at, off, name):
        put(at - 5, lambda: t.issue(f"ds_read_b32 v3, v15 offset:{off}", ("flag",)))
        def f1():
            t.drain(); a("v_cmp_eq_u32 vcc, 0, v3")
        put(at - 1, f1)
        def f2():
            if opt.get("xst") and name in ("c7", "cs"): stamp("a" + name)
            a(f"s_cbranch_vccnz L_slow_{name}\nL_back_{name}:")
            if opt.get("xst") and name in ("c7", "cs"): stamp("p" + name)
        put(at, f2)
        slow.append((off, name))
    for c in range(8):
        fill = {}
        def put(slot, f): fill.setdefault(slot, []).append(f)
        for j, base in ((1, 0), (2, 4), (3, 8), (4, 16), (5, 24)):
            k = 0
            for ks in range(2):
                for h in range(2):
                    put(base + k, (lambda j=j, ks=ks, h=h, c=c: wread(c, j, ks, h))); k += 1
        if c < 6:
            def bar(c=c):
                t.q = []
                a("s_waitcnt vmcnt(0) lgkmcnt(0)" if c == 0 else "s_waitcnt lgkmcnt(0)")
                if opt.get("xst"): stamp(f"xa{c}")
                a("s_barrier")
                if opt.get("xst"): stamp(f"xp{c}")
            put(BAR, bar)
        elif c == 6:
            flag_check(put, BAR, FL_YC7, "c7")
            put(BAR, lambda: t.issue(f"ds_write_b32 v14, v13 offset:{FL_XS0}", ("flag",)))
        else:
            CSB = opt.get("csb", 36)
            flag_check(put, CSB, FL_YCS, "cs")
            put(CSB + 1, lambda: t.issue(f"ds_write_b32 v14, v13 offset:{FL_XDONE}", ("flag",)))
            k = CSB + 1
            for i in range(4):
                put(k, lambda i=i: t.issue(f"ds_read_b32 v{MUR+i}, v{V_MU} offset:{64*i}", ("mu",))); k += 1
            for jj in range(3):
                for gu in range(2):
                    put(k, lambda jj=jj, gu=gu: t.issue(f"ds_read_b128 {vr(CSR+8*jj+4*gu,4)}, v{V_CS} offset:{384*gu+64*jj}", ("cs", jj))); k += 1
            assert k <= 48
        if c < 7:
            for k, f in enumerate(first_reads(c + 1)): put(BAR + 1 + k, f)
        m = 0
        for j in range(6):
            for i in range(4):
                for ks in range(2):
                    need = {("w", c, j, ks, 0), ("w", c, j, ks, 1), ("x", c, i, ks)}
                    if ks == 0 and opt.get("pairwait", 1): need |= {("w", c, j, 1, 0), ("w", c, j, 1, 1), ("x", c, i, 1)}
                    t.need(need)
                    cc = ACC + 16 * j + 4 * i
                    a(f"v_mfma_f32_16x16x32_bf16 {vr(cc,4)}, {vr(WF + 8*(j%3) + 4*ks, 4)}, {vr(XF + 32*(c&1) + 8*i + 4*ks, 4)}, {'0' if (c == 0 and ks == 0) else vr(cc,4)}")
                    for f in fill.get(m, []): f()
                    m += 1
    a("s_setprio 3")
    stamp("G1end")
    def hstore(jj, ip):
        a(f"buffer_store_dwordx4 {vr(16+8*jj+4*ip,4)}, v{V_H0+ip}, {srd(S_WS)}, s{HSO+jj} offen offset:{512*jj} sc1")
    LATE = opt.get("latest", 0)
    for jj in range(3):
        t.need({("cs", jj)})
        for ip in range(2):
            d = 16 + 8 * jj + 4 * ip
            for b in range(2):
                i = 2 * ip + b
                g = ACC + 32 * jj + 4 * i; u = g + 16
                mu = f"{vr(MUR + 2*ip, 2)}"
                sel = f"op_sel:[{b},0,0] op_sel_hi:[{b},1,1] neg_lo:[1,0,0] neg_hi:[1,0,0]"
                for hh in range(2):
                    a(f"v_pk_fma_f32 {vr(g+2*hh,2)}, {mu}, {vr(CSR+8*jj+2*hh,2)}, {vr(g+2*hh,2)} {sel}")
                    a(f"v_pk_fma_f32 {vr(u+2*hh,2)}, {mu}, {vr(CSR+8*jj+4+2*hh,2)}, {vr(u+2*hh,2)} {sel}")
                a(f"v_pk_mul_f32 {vr(g,2)}, {vr(g,2)}, {vr(u,2)}\nv_pk_mul_f32 {vr(g+2,2)}, {vr(g+2,2)}, {vr(u+2,2)}")
                if (jj, ip, b) == (2, 1, 1): lds_set(FL_XEPI)
                a(f"v_cvt_pk_bf16_f32 v{d+2*b}, v{g}, v{g+1}\nv_cvt_pk_bf16_f32 v{d+2*b+1}, v{g+2}, v{g+3}")
            a(f"s_nop 1\nv_permlane16_swap_b32 v{d}, v{d+2}\nv_permlane16_swap_b32 v{d+1}, v{d+3}")
            if not LATE: hstore(jj, ip)
    stamp("epi")
    if LATE:
        for jj in range(3):
            for ip in range(2): hstore(jj, ip)
    a("L_xg2:")
    stamp("hstored")
    PH, DB, HF, A2 = 144, 112, 16, 224
    lds_wait(15, FL_XDONE, 3)
    NPRE = opt.get("npre", 0 if ALLS else 3)
    xvm = VmTracker(a)
    xvm.q.append("hs")
    def POS(i): return i
    def wd_dma(i, ldsbase_s, ldsoff, tag):
        if opt.get("nowd") and i != 20: return
        a(f"s_add_u32 m0, s{ldsbase_s}, {ldsoff}\ns_lshl_b32 s61, s{ST+POS(i)}, 5")
        xvm.issue(f"buffer_load_dwordx4 v8, {srd(S_WD)}, s61 offen lds", tag)
        a("s_add_u32 m0, m0, 1024\ns_nop 0")
        xvm.issue(f"buffer_load_dwordx4 v9, {srd(S_WD)}, s61 offen lds", tag)
    todo = [p for p in range(6) if PLACE[1+p] == "X"] + [21] + list(range(11 if YA else 6, 21))
    if "order" in opt:
        assert sorted(opt["order"]) == sorted(todo[:-5])
        todo = list(opt["order"]) + todo[-5:]
    def wd_next():
        i = todo.pop(0)
        if i == 21:
            a(f"s_cmp_lg_u32 s{KH}, 0\ns_cbranch_scc1 L_xno21")
            nq = len(xvm.q)
            wd_dma(21, 73, L_E + 8192, "wd")
            del xvm.q[nq:]
            a("L_xno21:")
        elif i < 5: wd_dma(i, 74, 2 * STAGE + i * 4096, "xb")
        elif i == 5: wd_dma(i, 43, L_E, "wd")
        else: wd_dma(i, 74, ((i - 6) // 5) * STAGE + ((i - 6) % 5) * 4096, "wd")
    def wdread(dst, dt, h, off, tag):
        t.issue(f"ds_read_b64_tr_b16 {vr(dst + 4*dt + 2*h, 2)}, v{4+dt} offset:{off + 512*h}", tag)
    t = LgkmTracker(a)
    def prehold():
        for i in range(5):
            for dt in range(4):
                for h in range(2): wdread(PH + 16 * i, dt, h, 4096 * i, ("p",))
        t.drain()
        lds_set(FL_XPRE)
    for i in range(NPRE): wd_next()
    if ALLS:
        lds_wait(15, FL_YFL, 3)
        prehold()
        lds_wait(12, FL_XPRE, 3)
    xvm.need("hs")
    stamp("hflag")
    a("s_cmp_gt_u32 s66, 14\ns_cbranch_scc1 L_xsig1")
    ssignal(65)
    a("L_xsig1:\ns_sub_u32 s66, s66, 14\ns_cmp_gt_u32 s66, 14\ns_cbranch_scc1 L_xsig2\ns_add_u32 s66, s65, 128")
    ssignal(66)
    a("L_xsig2:")
    a(f"s_setprio {opt.get('xprio2', 3)}")
    if not ALLS:
        while len(todo) > 5 + opt.get("xa", 6): wd_next()
        if "X" in PLACE[1:6]:
            xvm.need("xb"); lds_set(FL_XA)
        while len(todo) > 5 + opt.get("phat", 3): wd_next()
        if "X" in PLACE[1:6]: lds_wait(12, FL_XA, 3)
        lds_wait(15, FL_YB0, 3)
        stamp("b0seen")
        prehold()
        MIX = opt.get("mix", 0)
        if MIX: a(f"s_mov_b32 s58, 0\ns_atomic_add s58, s[{S_WS}:{S_WS+1}], s67 glc")
        while todo[0] != 16: wd_next()
        lds_wait(12, FL_XPRE, 3)
    else: MIX = 0
    HD = opt.get("hd", 5)
    assert HD <= 7
    def hreg(i): return HF + 8 * (i % 8)
    def hload(i, ts):
        xvm.issue(f"buffer_load_dwordx4 {vr(hreg(i)+4*ts,4)}, v{10+ts}, {srd(S_WS)}, s{ST+POS(i)} offen sc1", ("h", i))
    if MIX:
        a("s_cmp_ge_u32 s58, 15\ns_cbranch_scc0 L_xnomix")
        q0, t0 = list(xvm.q), list(todo)
        for i in range(5):
            for ts in range(2): hload(i, ts)
            if i < MIX: wd_next()
            if i == MIX - 1:
                while todo: wd_next()
        for i in range(5, HD):
            for ts in range(2): hload(i, ts)
        a("s_branch L_xmixed\nL_xnomix:")
        xvm.q, todo[:] = q0, t0
    while len(todo) > opt.get("pollat", 4): wd_next()
    a(f"s_mov_b32 s58, 0\ns_atomic_add s58, s[{S_WS}:{S_WS+1}], s67 glc")
    while todo: wd_next()
    stamp("prepoll")
    spoll_check(67, 15, sleep=opt.get("hsleep", 1))
    for i in range(HD):
        for ts in range(2): hload(i, ts)
    a("L_xmixed:")
    stamp("hissued")
    a(f"s_and_b32 s60, s75, 3\ns_xor_b32 s60, s60, 1\ns_mul_i32 s60, s60, 6144\ns_add_u32 s60, s60, {L_RED}\nv_lshl_add_u32 v{V_RO}, v0, 4, s60")
    final_addr(75, 0)
    a(f"s_setprio {opt.get('g2prio', 1)}")
    t = LgkmTracker(a)
    if not MIX:
        xvm.need("wd")
        t.issue(f"ds_write_b32 v14, v13 offset:{FL_XDMA}", ("flag",))
    def slot(i):
        if i == 5: return ("E", 0)
        if i < 16: return ("R01", ((i - 6) // 5) * STAGE + ((i - 6) % 5) * 4096)
        if i < 21: return ("R2", (i - 16) * 4096)
        return ("E2", 0)
    region = ["R2a"]
    def step_reads(i):
        reg_, off = slot(i)
        out = []
        if reg_ != region[0]:
            op = {"E": "v_add_u32 v{r}, s71, v{r}", "R01": "v_subrev_u32 v{r}, s70, v{r}", "R2": "v_add_u32 v{r}, " + str(2*STAGE) + ", v{r}", "E2": "v_add_u32 v{r}, s72, v{r}"}[reg_]
            region[0] = reg_
            pre = [op.format(r=4 + q) for q in range(4)]
        else:
            pre = [None] * 4
        for dt in range(4):
            for h in range(2):
                def f(dt=dt, h=h):
                    if h == 0 and pre[dt]: a(pre[dt])
                    wdread(DB + 16 * (i & 1), dt, h, off, ("d", i, dt))
                out.append(f)
        return out
    xpq = final_xp()
    for i in range(22):
        fill = {}
        def put(slot_, f): fill.setdefault(slot_, []).append(f)
        if 5 <= i + 1 < 22:
            for k, f in enumerate(step_reads(i + 1)): put(k, f)
        if i + HD < 22:
            put(1, lambda i=i: hload(i + HD, 0)); put(5, lambda i=i: hload(i + HD, 1))
        if i == 2 and ALLS: flag_check(put, 7, FL_YB0, "yb0")
        if MIX:
            if i == 0: put(0, lambda: t.issue(f"ds_write_b32 v14, v13 offset:{FL_XDMA}", ("flag",)))
            if i == 5: put(0, lambda: t.issue(f"ds_write_b32 v14, v13 offset:{FL_XC}", ("flag",)))
            if i == 13:
                put(0, lambda: t.issue(f"ds_read_b32 v3, v15 offset:{FL_XC}", ("flagc",)))
                def fc():
                    t.need({("flagc",)}); a("v_cmp_eq_u32 vcc, 0, v3")
                put(5, fc)
                put(6, lambda: a("s_cbranch_vccnz L_slow_xc\nL_back_xc:"))
                slow.append((FL_XC, "xc"))
        if i == 3: flag_check(put, 7, FL_XDMA, "xdma")
        if i == 21 - HD - opt.get("yearly", 3): put(6, lambda: t.issue(f"ds_write_b32 v14, v13 offset:{FL_XHI}", ("flag",)))
        if i == 11: put(7, lambda: t.issue(f"ds_write_b32 v14, v13 offset:{FL_XMID}", ("flag",)))
        if i == 16:
            put(0, lambda: t.issue(f"ds_read2_b32 v[92:93], v15 offset0:{FL_XMID//4} offset1:{FL_YXL//4}", ("flag2",)))
            def f1():
                t.need({("flag2",)}); a("v_and_b32 v3, v92, v93")
            put(4, f1)
            put(6, lambda: a("v_cmp_eq_u32 vcc, 0, v3"))
            put(7, lambda: a("s_cbranch_vccnz L_slow_fin\nL_back_fin:"))
        if i == 17:
            for k in range(2): put(1 + 4 * k, lambda k=k: t.issue(f"ds_read_b64 {vr(XR+2*k,2)}, v{V_X+k}", ("xr",)))
        if 18 <= i <= 20:
            if i == 18: put(0, lambda: t.need({("xr",)}))
            for k in range(8): put(k, lambda: a(xpq.pop(0)))
        order = [(ts, dt) for dp in range(2) for ts in range(2) for dt in (2 * dp, 2 * dp + 1)]
        if i == 21: order = [(0, 0), (0, 1), (0, 2), (0, 3), (1, 2), (1, 3), (1, 0), (1, 1)]
        for m, (ts, dt) in enumerate(order):
            if m == 0: xvm.need(("h", i))
            if m == 0 and i in opt.get("gst", []): stamp(f"g{i}"); t.q = []
            if i >= 5: t.need({("d", i, dt & 2), ("d", i, dt | 1)})
            A = (PH + 16 * i if i < 5 else DB + 16 * (i & 1)) + 4 * dt
            c = A2 + 16 * ts + 4 * dt
            a(f"v_mfma_f32_16x16x32_bf16 {vr(c,4)}, {vr(A,4)}, {vr(hreg(i)+4*ts,4)}, {'0' if i == 0 else vr(c,4)}")
            for f in fill.get(m, []): f()
    assert not xpq
    stamp("G2end")
    a("s_nop 0")
    for dt in range(4): a(f"ds_write_b128 v{V_RO}, {vr(A2+4*dt,4)} offset:{1024*dt}")
    for dt in (2, 3): a(f"ds_write_b128 v{V_RP}, {vr(A2+16+4*dt,4)} offset:{2048+1024*dt}")
    a("s_waitcnt lgkmcnt(0)\ns_barrier")
    stamp("Z1")
    for k in range(2): a(f"ds_read_b128 {vr(OV+4*k,4)}, v{V_RP} offset:{1024*k}")
    a("L_final:")
    for k in range(2): a(f"ds_read_b64_tr_b16 {vr(XR+2*k,2)}, v{V_Y} offset:{2048*k}")
    a("s_waitcnt lgkmcnt(2)")
    ks = range(4)
    for k in ks: a(f"v_pk_add_f32 {vr(OV+2*k,2)}, {vr(OV+2*k,2)}, {vr(240+2*k,2)}")
    for k in ks: a(f"v_pk_mul_f32 {vr(EV+2*k,2)}, {vr(OV+2*k,2)}, {vr(V_S+2,2)} op_sel:[0,1] op_sel_hi:[1,1]")
    for k in ks: a(f"v_exp_f32 v{EV+2*k}, v{EV+2*k}\nv_exp_f32 v{EV+2*k+1}, v{EV+2*k+1}")
    for k in ks: a(f"v_pk_mul_f32 {vr(OV+2*k,2)}, {vr(OV+2*k,2)}, {vr(PV+2*k,2)}")
    for k in ks: a(f"v_pk_add_f32 {vr(EV+2*k,2)}, {vr(EV+2*k,2)}, 1.0 op_sel_hi:[1,0]")
    for k in ks: a(f"v_rcp_f32 v{EV+2*k}, v{EV+2*k}\nv_rcp_f32 v{EV+2*k+1}, v{EV+2*k+1}")
    a("s_waitcnt lgkmcnt(0)")
    for k in ks: a(f"v_lshlrev_b32 v{YV+2*k}, 16, v{XR+k}\nv_and_b32 v{YV+2*k+1}, 0xffff0000, v{XR+k}")
    for k in ks: a(f"v_pk_mul_f32 {vr(OV+2*k,2)}, {vr(OV+2*k,2)}, {vr(EV+2*k,2)}")
    for k in ks: a(f"v_pk_fma_f32 {vr(OV+2*k,2)}, {vr(OV+2*k,2)}, {vr(YV+2*k,2)}, {vr(XV+2*k,2)}")
    for k in ks: a(f"v_cvt_pk_bf16_f32 v{104+k}, v{OV+2*k}, v{OV+2*k+1}")
    a("s_nop 1\nv_permlane16_swap_b32 v104, v106\nv_permlane16_swap_b32 v105, v107")
    if opt.get("ostage", 1): a("ds_write_b128 v86, v[104:107]\nds_read_b128 v[104:107], v87\ns_waitcnt lgkmcnt(0)")
    a(f"buffer_store_dwordx4 v[104:107], v{V_O}, {srd(S_OUT)}, 0 offen {opt.get('outaux', 'sc1')}")
    if prof:
        a("s_waitcnt vmcnt(0)\ns_memrealtime s[76:77]\ns_lshl_b32 s60, s2, 8\ns_lshl2_add_u32 s60, s3, s60")
        a(f"s_add_u32 s60, s60, {WS_PROF + 96}\nv_mov_b32 v3, 0\ns_waitcnt lgkmcnt(0)\nv_mov_b32 v4, s76\nbuffer_store_dword v4, v3, {srd(S_WS)}, s60 offen")
        a("s_cmp_ge_u32 s3, 4\ns_cbranch_scc1 L_end")
    if prof:
        stamp("end")
        dump_stamps(0)
    a("s_endpgm")
    for off, name in slow:
        a(f"L_slow_{name}:")
        lds_wait(15, off, 3)
        a(f"s_branch L_back_{name}")
    if opt.get("idle", 1):
        a("L_xidle:")
        a(f"s_setprio 0\ns_and_b32 s60, s{S_J}, 1\ns_lshl2_add_u32 s60, s60, s3")
        a(f"v_and_b32 v16, 7, v0\nv_lshlrev_b32 v16, 4, v16\nv_lshrrev_b32 v17, 3, v0\nv_lshl_add_u32 v16, v17, 10, v16")
        a(f"s_lshl_b32 s61, s60, 13\ns_lshl_b32 s30, s{S_DB2}, 7\ns_add_u32 s61, s61, s30\nv_add_u32 v16, s61, v16")
        NX = opt.get("idlen", 0); STR = 1376 // (8 * max(NX, 1))
        a(f"s_mul_i32 s61, s60, {STR*1024}\nv_lshl_add_u32 v17, v0, 4, s61")
        a("s_waitcnt vmcnt(0)\ns_barrier\ns_barrier\ns_mov_b32 s30, 0\ns_mov_b32 s31, 0")
        for i in range(opt.get("idlec", 0)):
            a(f"buffer_load_dwordx4 v[20:23], v16, {srd(S_WD)}, s30 offen\ns_add_u32 s30, s30, 65536")
            if i < NX: a(f"buffer_load_dwordx4 v[24:27], v17, {srd(S_WD)}, s31 offen\ns_add_u32 s31, s31, {8*STR*1024}")
        a("s_waitcnt vmcnt(0)\ns_barrier\ns_barrier\ns_barrier\ns_barrier")
        lds_wait(15, FL_YC7, 3, sleep=1)
        lds_wait(15, FL_YCS, 3, sleep=1)
        lds_set(FL_XS0); lds_set(FL_XDONE); lds_set(FL_XEPI)
        a("s_setprio 3\ns_branch L_xg2")
    a("L_slow_fin:")
    lds_wait(15, FL_XMID, 3)
    lds_wait(15, FL_YXL, 3)
    a("s_branch L_back_fin")
    a("L_end:")
    return a.text()


def code_span(txt):
    import subprocess, tempfile, os
    d = tempfile.mkdtemp()
    open(d + "/a.s", "w").write(txt)
    subprocess.run(["clang", "-x", "assembler", "-target", "amdgcn-amd-amdhsa", "-mcpu=gfx950", "-c", d + "/a.s", "-o", d + "/a.o"], check=True)
    sym = subprocess.run(["llvm-objdump", "-t", d + "/a.o"], capture_output=True, text=True, check=True).stdout
    v = {l.split()[-1]: int(l.split()[0], 16) for l in sym.split("\n") if l.endswith(("L_pc", "L_end"))}
    return v["L_end"] - v["L_pc"]


def full_text(opt=None):
    opt = dict(opt or {})
    if opt.get("codepf", 1):
        span = code_span(full_text1(opt))
        opt["_slice"] = ((span - 8) // 32) & ~7
        txt = full_text1(opt)
        assert code_span(txt) == span and 32 * opt["_slice"] + 4 <= span and 520 <= opt["_slice"] <= 2040
        return txt
    return full_text1(opt)


def full_text1(opt=None):
    ref = open(f"cdna_kernels/{NAME}.s.ref").read().split("\n")
    head = [l for l in ref if l.startswith(";") and "@launch" not in l and not l.startswith("; Override") and not l.startswith("; grid=")]
    out = "\n".join(head) + "\n"
    out += f"; @launch grid=(256,1,1) block=(512,1,1) lds={LDS_BYTES}\n"
    out += f""".amdgcn_target "amdgcn-amd-amdhsa--gfx950"
.text
.p2align {(opt or {}).get("talign", 12)}
.globl {NAME}_kernel
.p2align 8
.type {NAME}_kernel,@function
{NAME}_kernel:
"""
    out += gen(opt)
    out += f"""    s_endpgm
.section .rodata,"a"
.p2align 6
.amdhsa_kernel {NAME}_kernel
  .amdhsa_next_free_vgpr 256
  .amdhsa_next_free_sgpr 102
  .amdhsa_accum_offset 256
  .amdhsa_group_segment_fixed_size 0
  .amdhsa_kernarg_size 104
  .amdhsa_user_sgpr_count 2
  .amdhsa_user_sgpr_kernarg_segment_ptr 1
  .amdhsa_system_sgpr_workgroup_id_x 1
.end_amdhsa_kernel
"""
    return out


if __name__ == "__main__":
    import hazard, json
    opt = json.loads(sys.argv[2]) if len(sys.argv) > 2 else {}
    txt = full_text(opt)
    bad = hazard.check(txt)
    for b in bad: print("HAZARD", b)
    path = sys.argv[1] if len(sys.argv) > 1 else f"cdna_kernels/{NAME}.s"
    open(path, "w").write(txt)
    print("wrote", path, len(txt), "bytes")
```
